```python
import torch

def _softmax(x, axis=-1):
    return torch.softmax(x, dim=axis)
def _gelu(x):
    return torch.nn.functional.gelu(x, approximate="tanh")
def _silu(x):
    return torch.nn.functional.silu(x)
def _sigmoid(x):
    return torch.sigmoid(x)
def _layernorm(x, axis=-1, eps=1e-5):
    m = x.mean(dim=axis, keepdim=True)
    v = x.var(dim=axis, keepdim=True, unbiased=False)
    return (x - m) / torch.sqrt(v + eps)
def _scatter_add(tgt, idx, src, axis=0):
    return tgt.clone().index_add_(axis, idx, src)
def _segment_sum(src, seg, n):
    out = torch.zeros((n,) + src.shape[1:], dtype=src.dtype)
    return out.index_add_(0, seg, src)
def _pad(x, pw):
    flat = tuple(v for pair in reversed(pw) for v in pair)
    return torch.nn.functional.pad(x, flat)

kernel_name = 'concat_heads__linear_kernel_hedgehog__spectral_fnet__prompt'

def setup_inputs():

    _w = (lambda a: (lambda t: t.to(torch.bfloat16) if t.is_floating_point() else t)(torch.as_tensor(a)))
    def _A_setup():
        B, S, D, H = 1, 2048, 640, 32
        Dh = D // H
        return {
            "x": _w((lambda *s: torch.randn(*s, dtype=torch.bfloat16) * 0.2)(B, S, D)),
            "wqkv": _w((lambda *s: torch.randn(*s, dtype=torch.bfloat16) * 1.6)(D, 3 * D)),
            "w_phi": _w((lambda *s: torch.randn(*s, dtype=torch.bfloat16) * 1.6)(H, Dh, Dh) * (Dh ** -0.5)),
            "wo": _w((lambda *s: torch.randn(*s, dtype=torch.bfloat16) * 0.8)(D, D)),
        }
    _A_in = _A_setup()

    def _B_setup():
        B, S, D = 1, 2048, 640
        ns = torch.arange(S)[:, None] * torch.arange(S)[None, :]
        nd = torch.arange(D)[:, None] * torch.arange(D)[None, :]
        Ws_re = torch.cos(-2.0 * torch.pi * ns / S).to(float)
        Ws_im = torch.sin(-2.0 * torch.pi * ns / S).to(float)
        Wd_re = torch.cos(-2.0 * torch.pi * nd / D).to(float)
        Wd_im = torch.sin(-2.0 * torch.pi * nd / D).to(float)
        return {
            "x": _w((lambda *s: torch.randn(*s, dtype=torch.bfloat16) * 0.05)(B, S, D)),
            "dft_seq_re": _w(Ws_re),
            "dft_seq_im": _w(Ws_im),
            "dft_hid_re": _w(Wd_re),
            "dft_hid_im": _w(Wd_im),
        }
    _B_in = _B_setup()

    return {
        "A_x": _A_in["x"],
        "A_wqkv": _A_in["wqkv"],
        "A_w_phi": _A_in["w_phi"],
        "A_wo": _A_in["wo"],
        "B_x": _B_in["x"],
        "B_dft_seq_re": _B_in["dft_seq_re"],
        "B_dft_seq_im": _B_in["dft_seq_im"],
        "B_dft_hid_re": _B_in["dft_hid_re"],
        "B_dft_hid_im": _B_in["dft_hid_im"],
    }

def reference(A_x, A_wqkv, A_w_phi, A_wo, B_x, B_dft_seq_re, B_dft_seq_im, B_dft_hid_re, B_dft_hid_im):
    def _A_ref(x, wqkv, w_phi, wo):
        B, S, D = x.shape
        H = 32; Dh = D // H
        qkv = (lambda x, *d: x.permute(*d))((x @ wqkv).reshape(B, S, 3, H, Dh), 2, 0, 3, 1, 4)
        q, k, v = qkv[0], qkv[1], qkv[2]
        pq = torch.einsum("bhsd,hdf->bhsf", q, w_phi)
        pk = torch.einsum("bhsd,hdf->bhsf", k, w_phi)
        phi_q = torch.concatenate([_softmax(pq, axis=-1), _softmax(-pq, axis=-1)], axis=-1)
        phi_k = torch.concatenate([_softmax(pk, axis=-1), _softmax(-pk, axis=-1)], axis=-1)
        kv = torch.einsum("bhsf,bhsd->bhfd", phi_k, v)
        z  = torch.einsum("bhsf->bhf", phi_k)
        num = torch.einsum("bhqf,bhfd->bhqd", phi_q, kv)
        den = torch.einsum("bhqf,bhf->bhq", phi_q, z)[..., None] + 1e-6
        o = num / den
        return (lambda x, *d: x.permute(*d))(o, 0, 2, 1, 3).reshape(B, S, D) @ wo

    def _B_ref(x, dft_seq_re, dft_seq_im, dft_hid_re, dft_hid_im):
        a = torch.einsum("bsd,ed->bse", x, dft_hid_re)
        b = torch.einsum("bsd,ed->bse", x, dft_hid_im)
        y = torch.einsum("ts,bse->bte", dft_seq_re, a) - torch.einsum("ts,bse->bte", dft_seq_im, b)
        return y

    a = _A_ref(A_x, A_wqkv, A_w_phi, A_wo)
    b = _B_ref(B_x, B_dft_seq_re, B_dft_seq_im, B_dft_hid_re, B_dft_hid_im)
    return torch.concatenate([a, b], axis=-1)
```

```python
NAME = "concat_heads__linear_kernel_hedgehog__spectral_fnet__prompt"

class Asm:
    def __init__(self):
        self.lines = []
        self.nlab = 0
    def __call__(self, s=""):
        for l in s.split("\n"):
            self.lines.append("    " + l.strip() if l.strip() and not l.strip().endswith(":") else l.strip())
    def c(self, s):
        self.lines.append("    ; " + s)
    def label(self, base="L"):
        self.nlab += 1
        return "%s_%d" % (base, self.nlab)
    def text(self):
        return "\n".join(self.lines) + "\n"

def kernel_desc(name, vgpr, sgpr, accum):
    return f""".section .rodata,"a"
.p2align 6
.amdhsa_kernel {name}
  .amdhsa_next_free_vgpr {vgpr}
  .amdhsa_next_free_sgpr {sgpr}
  .amdhsa_accum_offset {accum}
  .amdhsa_group_segment_fixed_size 0
  .amdhsa_kernarg_size 96
  .amdhsa_user_sgpr_count 2
  .amdhsa_user_sgpr_kernarg_segment_ptr 1
  .amdhsa_system_sgpr_workgroup_id_x 1
.end_amdhsa_kernel
"""

def kernel_head(name):
    return f""".text
.globl {name}
.p2align 8
.type {name},@function
{name}:
"""

def srd(a, d, base, nbytes):
    a(f"s_mov_b32 s{d}, s{base}")
    a(f"s_and_b32 s{d+1}, s{base+1}, 0xffff")
    a(f"s_mov_b32 s{d+2}, {nbytes}")
    a(f"s_mov_b32 s{d+3}, 0x20000")

def stamp(a, idx, nst, ws_srd, wgreg, tmp_s, tmp_v, off):
    a(f"s_memrealtime s[{tmp_s}:{tmp_s+1}]")
    a(f"s_mul_i32 s{tmp_s+2}, s{wgreg}, {nst*8}")
    a(f"s_add_u32 s{tmp_s+2}, s{tmp_s+2}, {off + idx*8}")
    a("s_waitcnt lgkmcnt(0)")
    a(f"v_mov_b32 v{tmp_v}, s{tmp_s}")
    a(f"v_mov_b32 v{tmp_v+1}, s{tmp_s+1}")
    a(f"v_mov_b32 v{tmp_v+2}, 0")
    a(f"buffer_store_dwordx2 v[{tmp_v}:{tmp_v+1}], v{tmp_v+2}, s[{ws_srd}:{ws_srd+3}], s{tmp_s+2} offen")
```

```python
import re, sys
TRANS = ("v_exp_f32", "v_log_f32", "v_rcp_f32", "v_rsq_f32", "v_sqrt_f32", "v_sin_f32", "v_cos_f32")
def regs(tok):
    tok = tok.strip().lstrip("-").replace("abs(", "").replace(")", "").replace("|", "")
    m = re.fullmatch(r"([vsa])(\d+)", tok)
    if m: return [(m.group(1), int(m.group(2)))]
    m = re.fullmatch(r"([vsa])\[(\d+):(\d+)\]", tok)
    if m: return [(m.group(1), i) for i in range(int(m.group(2)), int(m.group(3)) + 1)]
    if tok in ("vcc", "exec"): return [(tok, 0)]
    if tok == "m0": return [("m0", 0)]
    return []
class I: pass
def parse(line):
    s = line.split(";")[0].strip()
    if not s or s.endswith(":") or s.startswith("."): return None
    p = s.split(None, 1)
    i = I(); i.op = p[0]; i.text = s
    ops = []
    if len(p) > 1:
        ops = [t.strip() for t in re.split(r",\s*(?![^\[]*\])", p[1])]
        if ops:
            last = ops[-1].split()
            ops[-1] = last[0] if last else ""
            i.mods = last[1:]
        else: i.mods = []
    else: i.mods = []
    i.ops = ops
    op = i.op
    i.kind = "other"; i.w = []; i.r = []; i.states = 1; i.passes = 0; i.srcc = []; i.ab = []
    if op == "s_nop": i.states = int(ops[0], 0) + 1; i.kind = "nop"; return i
    if op.startswith("v_mfma"):
        i.kind = "mfma"; i.passes = 8 if "32x32" in op else 4
        i.w = regs(ops[0]); i.ab = regs(ops[1]) + regs(ops[2]); i.srcc = regs(ops[3]); i.r = i.ab + i.srcc
    elif op.startswith("v_"):
        i.kind = "valu"
        if op.startswith("v_cmp"):
            i.w = regs(ops[0]); i.r = sum((regs(o) for o in ops[1:]), [])
        elif op.startswith("v_readfirstlane") or op.startswith("v_readlane"):
            i.w = regs(ops[0]); i.r = regs(ops[1]); i.kind = "valu"; i.lane = True
        elif op.startswith("v_permlane"):
            i.w = regs(ops[0]) + regs(ops[1]); i.r = list(i.w)
        elif op.startswith("v_cndmask"):
            i.w = regs(ops[0]); i.r = sum((regs(o) for o in ops[1:]), [])
        elif op.startswith("v_add_co") or op.startswith("v_addc_co"):
            i.w = regs(ops[0]) + regs(ops[1]); i.r = sum((regs(o) for o in ops[2:]), [])
        else:
            i.w = regs(ops[0]); i.r = sum((regs(o) for o in ops[1:]), [])
            if op.startswith("v_fmac") or op.startswith("v_pk_fmac"): i.r += i.w
        i.trans = op.replace("_e32", "").replace("_e64", "") in TRANS
    elif op.startswith("buffer_") or op.startswith("global_"):
        i.kind = "vmem"
        allr = sum((regs(o) for o in ops), [])
        lds = "lds" in i.mods or "_lds_" in op
        i.lds = lds
        if "load" in op and not lds:
            i.w = regs(ops[0]); i.r = sum((regs(o) for o in ops[1:]), [])
        else:
            i.r = allr
        i.widestore = ("store" in op and ("x4" in op or "x3" in op))
        if i.widestore:
            i.sdata = regs(ops[0]) if op.startswith("buffer_") else regs(ops[1])
        if lds: i.r = i.r + [("m0", 0)]
    elif op.startswith("ds_"):
        i.kind = "ds"
        if "read" in op or "permute" in op or "swizzle" in op:
            i.w = regs(ops[0]); i.r = sum((regs(o) for o in ops[1:]), [])
        else: i.r = sum((regs(o) for o in ops), [])
    elif op.startswith("s_"):
        i.kind = "salu"
        if op.startswith(("s_cmp", "s_cbranch", "s_branch", "s_waitcnt", "s_barrier", "s_endpgm", "s_sleep", "s_setprio")):
            i.r = sum((regs(o) for o in ops), [])
        else:
            i.w = regs(ops[0]) if ops else []; i.r = sum((regs(o) for o in ops[1:]), [])
            if "saveexec" in op: i.w += [("exec", 0)]
    return i
def need(p, c):
    n = 0
    pw = set(p.w)
    if p.kind == "valu":
        vw = {x for x in pw if x[0] in "va"}
        sw = {x for x in pw if x[0] in ("s", "vcc")}
        if c.kind == "mfma" and vw & set(c.r): n = max(n, 2)
        if c.kind == "valu":
            if getattr(c, "lane", False) and vw & set(c.r): n = max(n, 1)
            if c.op.startswith("v_permlane") and vw & set(c.r): n = max(n, 2)
            if ("dpp" in c.op or any(m.startswith(("row_", "quad_perm")) for m in c.mods)) and vw & set(c.r): n = max(n, 2)
            if getattr(p, "trans", False) and not getattr(c, "trans", False) and vw & set(c.r): n = max(n, 1)
            if sw & set(c.r): n = max(n, 2)
            if c.op.startswith("v_cndmask") and ("vcc", 0) in sw and len(c.ops) >= 4 and c.ops[3] == "vcc": n = max(n, 2)
        if getattr(p, "trans", False) and c.kind in ("mfma",) and vw & set(c.r): n = max(n, 2)
        if c.kind == "vmem" and sw & set(c.r): n = max(n, 5)
        if c.kind == "salu" and sw & set(c.r) and "saveexec" not in c.op: n = max(n, 1)
    if p.kind == "mfma":
        big = 12 if p.passes == 8 else 8
        if c.kind == "mfma":
            if pw & set(c.ab): n = max(n, big)
            if pw & set(c.srcc):
                if not (set(c.srcc) == pw and c.passes == p.passes): n = max(n, big - 2)
            if pw & set(c.w) and not (set(c.w) == pw): n = max(n, big)
        elif c.kind in ("valu", "vmem", "ds"):
            if pw & (set(c.r) | set(c.w)): n = max(n, big)
        if c.kind == "valu" and set(p.srcc) & set(c.w) and p.srcc: n = max(n, 7 if p.passes == 8 else 3)
    if p.kind == "vmem" and getattr(p, "widestore", False):
        if set(p.sdata) & set(c.w): n = max(n, 2)
    if p.kind == "salu" and ("m0", 0) in pw and c.kind == "vmem" and getattr(c, "lds", False): n = max(n, 1)
    if p.kind == "salu" and ("exec", 0) in pw: pass
    return n
def check(text, verbose=True):
    lines = text.split("\n")
    ins = []; labels = {}
    for ln, l in enumerate(lines):
        s = l.split(";")[0].strip()
        if s.endswith(":") and not s.startswith("."): labels[s[:-1]] = len(ins)
        i = parse(l)
        if i: i.ln = ln + 1; ins.append(i)
    bad = []
    def scan(seq):
        for a in range(len(seq)):
            p = seq[a]
            if p.kind in ("nop", "other"): continue
            d = 0
            for b in range(a + 1, len(seq)):
                c = seq[b]
                n = need(p, c)
                if n > d: bad.append((p.ln, c.ln, n, d, p.text, c.text))
                d += c.states
                if d >= 13: break
                if c.op in ("s_branch", "s_endpgm"): break
    scan(ins)
    for k, i in enumerate(ins):
        if i.op.startswith(("s_cbranch", "s_branch")) and i.ops and i.ops[0] in labels:
            t = labels[i.ops[0]]
            pre = ins[max(0, k - 14):k + 1]
            for q in range(len(pre) - 2, -1, -1):
                if pre[q].op in ("s_branch", "s_endpgm"): pre = pre[q + 1:]; break
            br = I(); br.__dict__.update(i.__dict__); br.op = "s_taken"
            scan(pre[:-1] + [br] + ins[t:t + 14])
    bad = sorted(set(bad))
    if verbose:
        for b in bad: print("HAZARD line %d -> %d need %d have %d :: %s  ==>  %s" % b)
    return bad
if __name__ == "__main__":
    b = check(open(sys.argv[1]).read())
    print("hazards:", len(b))
```

```python
import sys, math, struct
from asmlib import Asm, NAME, kernel_head, kernel_desc
import hazard

ACC = 0
KVC = 0x20000
OC = 0x20800
OB = 0x40000
UB = 0x300000
STAMPS = 0x600000
DUMP = 0x800000
WS_BYTES = 0x1000000
LDS_BYTES = 163840
WPHI = 147456
KVIMG = 155136
KVZERO = KVIMG + 6720
HAND = 0
VIMG = 12288; VS = 168
PHIMG = 73728; PS = 336
WOIMG = 16384
ZIMG = 118784; ZS = 1288
VB = 139392; VBS = 144; VBW = 21 * 144
RED = 118784
NINIT = 48; NB1 = 80
SPIN = 1 << 22

sX, sW, sPHI, sWO, sBX, sOUT, sDBG, sWS = 8, 12, 16, 20, 24, 28, 32, 36
sWAVE, sRB, sG, sJL, sXCD, sJ, sROT, sCW = 40, 41, 42, 43, 44, 45, 46, 47
sIT, sSLOT, sXK, sWK, sKI, sXROW, sWROW, sSIG = 48, 49, 50, 51, 52, 53, 54, 55
sT0, sT1, sT2, sT3, sT4, sT5 = 56, 57, 58, 59, 60, 61
sP, sSPIN = 62, 63
sEX = 64
sA, sB, sC, sD, sE, sF = 66, 67, 68, 69, 70, 71
ST0 = 72

def f32(x): return "0x%08x" % struct.unpack("<I", struct.pack("<f", x))[0]
def vr(b, n=1): return f"v{b}" if n == 1 else f"v[{b}:{b+n-1}]"
def sr(b, n=4): return f"s[{b}:{b+n-1}]"

class Gen:
    def __init__(self, stamps=False, dump=None, rot=True):
        self.a = Asm(); self.stamps = stamps; self.dump = dump; self.rot = rot
    def st(self, i):
        if self.stamps: self.a(f"s_memrealtime s[{ST0+2*i}:{ST0+2*i+1}]")
    def align8(self):
        self.a(".p2align 3")

    def poll(self, srd, soff, target, name):
        a = self.a
        L = a.label("POLL"); D = a.label("POLLD")
        a("v_mov_b32 v2, 0")
        a(f"s_mov_b32 s{sSPIN}, {SPIN}")
        a(f"{L}:")
        a(f"buffer_load_dword v3, v2, {sr(srd)}, {soff} offen sc1")
        a("s_waitcnt vmcnt(0)")
        a(f"v_readfirstlane_b32 s{sT5}, v3")
        a(f"s_sub_u32 s{sSPIN}, s{sSPIN}, 1")
        a(f"s_cbranch_scc1 {D}")
        a(f"s_cmp_lt_u32 s{sT5}, {target}")
        a(f"s_cbranch_scc1 {L}")
        a(f"{D}:")
    def signal(self, srd, soff):
        a = self.a
        a("v_mov_b32 v2, 0")
        a("v_mov_b32 v3, 1")
        a(f"s_mov_b64 s[{sEX}:{sEX+1}], exec")
        a("s_mov_b64 exec, 1")
        a(f"buffer_atomic_add v3, v2, {sr(srd)}, {soff} offen")
        a(f"s_mov_b64 exec, s[{sEX}:{sEX+1}]")
    def trlane(self, blk, r, cq, h):
        a = self.a
        a(f"v_bfe_u32 v{blk}, v1, 4, 1")
        a(f"v_bfe_u32 v{r}, v1, 2, 2")
        a(f"v_and_b32 v{cq}, 3, v1")
        a(f"v_lshrrev_b32 v{h}, 5, v1")

    def prologue(self):
        a = self.a
        a("s_cmp_ge_u32 s2, 256")
        a("s_cbranch_scc1 L_END")
        a(f"s_load_dwordx2 s[{sX}:{sX+1}], s[0:1], 0")
        a(f"s_load_dwordx2 s[{sW}:{sW+1}], s[0:1], 8")
        a(f"s_load_dwordx2 s[{sBX}:{sBX+1}], s[0:1], 32")
        a(f"s_load_dwordx2 s[{sWS}:{sWS+1}], s[0:1], 88")
        a("s_load_dwordx4 s[4:7], s[0:1], 16")
        a("s_load_dwordx4 s[56:59], s[0:1], 72")
        self.st(0)
        if self.stamps:
            for i in range(1, 12): a(f"s_mov_b64 s[{ST0+2*i}:{ST0+2*i+1}], 0")
        a("v_lshrrev_b32 v2, 6, v0")
        a("v_and_b32 v1, 63, v0")
        a(f"v_readfirstlane_b32 s{sWAVE}, v2")
        a(f"s_and_b32 s{sXCD}, s2, 7")
        a(f"s_lshr_b32 s{sJ}, s2, 3")
        a(f"s_and_b32 s{sJL}, s{sJ}, 15")
        a(f"s_and_b32 s{sRB}, s{sJL}, 3")
        a(f"s_lshr_b32 s{sG}, s{sJL}, 2")
        if self.rot:
            a(f"s_add_u32 s{sROT}, s{sRB}, s{sG}")
            a(f"s_and_b32 s{sROT}, s{sROT}, 3")
            a(f"s_mul_i32 s{sROT}, s{sROT}, 5")
            a(f"s_add_u32 s{sROT}, s{sROT}, 1")
            a(f"s_lshr_b32 s{sROT}, s{sROT}, 1")
        else:
            a(f"s_mov_b32 s{sROT}, 0")
        a(f"s_and_b32 s{sA}, s{sXCD}, 3")
        a(f"s_lshl2_add_u32 s{sRB}, s{sA}, s{sRB}")
        a(f"s_lshr_b32 s{sA}, s{sXCD}, 2")
        a(f"s_lshl2_add_u32 s{sG}, s{sA}, s{sG}")
        a(f"s_and_b32 s{sCW}, s{sWAVE}, 3")
        a(f"s_lshr_b32 s{sP}, s{sWAVE}, 2")
        for s, nb in ((sX, 2048*1280), (sW, 640*3840), (sPHI, 32*800), (sWO, 640*1280), (sBX, 2048*1280),
                      (sOUT, 2048*2560), (sDBG, 256), (sWS, WS_BYTES)):
            a(f"s_mov_b32 s{s+2}, {nb}")
            a(f"s_mov_b32 s{s+3}, 0x20000")
        a("s_waitcnt lgkmcnt(0)")
        a(f"s_mov_b64 s[{sPHI}:{sPHI+1}], s[4:5]")
        a(f"s_mov_b64 s[{sWO}:{sWO+1}], s[6:7]")
        a(f"s_mov_b64 s[{sOUT}:{sOUT+1}], s[56:57]")
        a(f"s_mov_b64 s[{sDBG}:{sDBG+1}], s[58:59]")

    def loader(self, kv, tag):
        a = self.a
        NP = 5 if kv else 3
        CPR = 20 if kv else 12
        SLOT = 16384 + NP * 4096
        per = 4 + NP
        vX, vW = 4, 8
        a("v_lshrrev_b32 v2, 3, v1")
        a("v_and_b32 v3, 7, v1")
        a("v_lshrrev_b32 v13, 4, v1")
        a("v_xor_b32 v3, v3, v13")
        a("v_mul_u32_u24 v2, 1280, v2")
        a(f"v_lshl_add_u32 v{vX}, v3, 4, v2")
        a(f"v_xor_b32 v3, 64, v{vX}")
        a(f"v_add_u32 v{vX+1}, {10240-1024}, v3")
        a(f"v_add_u32 v{vX+2}, {2*(10240-1024)}, v{vX}")
        a(f"v_add_u32 v{vX+3}, {3*(10240-1024)}, v3")
        a(f"s_lshl_b32 s{sA}, s{sRB}, 2")
        a(f"s_add_u32 s{sA}, s{sA}, s{sCW}")
        a(f"s_mul_i32 s{sXROW}, s{sA}, {32*1280}")
        a(f"s_lshl_b32 s{sXK}, s{sROT}, 7")
        a(f"s_add_u32 s{sXK}, s{sXK}, s{sXROW}")
        a(f"s_lshl_b32 s{sSLOT}, s{sCW}, 12")
        a(f"s_mul_i32 s{sB}, s{sCW}, {NP*1024 - 4096}")
        a(f"s_add_u32 s{sB}, s{sB}, 16384")
        a(f"s_mul_i32 s{sWROW}, s{sCW}, {16*3840}")
        a(f"s_mul_i32 s{sA}, s{sG}, 160")
        a(f"s_add_u32 s{sWROW}, s{sWROW}, s{sA}")
        if kv: a(f"s_add_u32 s{sWROW}, s{sWROW}, 1280")
        a(f"s_mul_i32 s{sWK}, s{sROT}, {64*3840}")
        a(f"s_add_u32 s{sWK}, s{sWK}, s{sWROW}")
        a(f"s_mov_b32 s{sKI}, s{sROT}")
        def issue_x():
            a(f"s_mov_b32 m0, s{sSLOT}")
            a("s_nop 0")
            for i in range(4):
                a(f"buffer_load_dwordx4 v{vX+i}, {sr(sX)}, s{sXK} offen offset:{1024*i} lds")
        def issue_w():
            a(f"s_add_u32 m0, s{sSLOT}, s{sB}")
            a("s_nop 0")
            for i in range(min(NP, 4)):
                a(f"buffer_load_dwordx4 v{vW+i}, {sr(sW)}, s{sWK} offen offset:{1024*i} lds")
            if NP == 5:
                a("s_add_u32 m0, m0, 4096")
                a("s_nop 0")
                a(f"buffer_load_dwordx4 v{vW+4}, {sr(sW)}, s{sWK} offen lds")
        def advance():
            a(f"s_add_u32 s{sKI}, s{sKI}, 1")
            a(f"s_add_u32 s{sXK}, s{sXK}, 128")
            a(f"s_add_u32 s{sWK}, s{sWK}, {64*3840}")
            a(f"s_cmp_eq_u32 s{sKI}, 10")
            a(f"s_cselect_b32 s{sKI}, 0, s{sKI}")
            a(f"s_cselect_b32 s{sXK}, s{sXROW}, s{sXK}")
            a(f"s_cselect_b32 s{sWK}, s{sWROW}, s{sWK}")
            a(f"s_add_u32 s{sSLOT}, s{sSLOT}, {SLOT}")
            a(f"s_cmp_ge_u32 s{sSLOT}, {4*SLOT}")
            a(f"s_cselect_b32 s{sA}, {4*SLOT}, 0")
            a(f"s_sub_u32 s{sSLOT}, s{sSLOT}, s{sA}")
        issue_x()
        mul = (65536 + CPR - 1) // CPR
        for q in range(64 * NP): assert (q * mul) >> 16 == q // CPR
        for i in range(NP):
            comp = 1024 * i if i < 4 else 0
            a(f"v_add_u32 v2, {64*i}, v1")
            a(f"v_mul_u32_u24 v3, {mul}, v2")
            a("v_lshrrev_b32 v3, 16, v3")
            a(f"v_mul_u32_u24 v13, {CPR}, v3")
            a("v_sub_u32 v2, v2, v13")
            a("v_mul_u32_u24 v3, 3840, v3")
            a("v_cmp_lt_u32 vcc, 9, v2")
            a("v_lshl_add_u32 v3, v2, 4, v3")
            a(f"v_mov_b32 v13, {1120 if kv else 0x40000000}")
            a("v_cndmask_b32 v13, 0, v13, vcc")
            if comp: a(f"v_subrev_u32 v3, {comp}, v3")
            a(f"v_add_u32 v{vW+i}, v3, v13")
        issue_w(); advance()
        self.st(1)
        issue_x(); issue_w(); advance()
        issue_x(); issue_w(); advance()
        a(f"s_mov_b32 s{sIT}, 0")
        L = f"L_LD_{tag}"
        self.align8()
        a(f"{L}:")
        a(f"s_waitcnt vmcnt({2*per})")
        a("s_barrier")
        if not kv:
            S = a.label("NOSIG")
            a(f"s_cmp_eq_u32 s{sIT}, 1")
            a(f"s_cbranch_scc0 {S}")
            a(f"s_cmp_eq_u32 s{sWAVE}, 4")
            a(f"s_cbranch_scc0 {S}")
            self.signal(sDBG, f"s{sSIG}")
            a(f"{S}:")
        issue_x(); issue_w(); advance()
        a(f"s_add_u32 s{sIT}, s{sIT}, 1")
        a(f"s_cmp_lt_u32 s{sIT}, 7")
        a(f"s_cbranch_scc1 {L}")
        a("v_mov_b32 v2, 0")
        a(f"buffer_load_dword v14, v2, {sr(sDBG)}, 0 offen sc1")
        a(f"s_waitcnt vmcnt({2*per})")
        a("s_barrier")
        a(f"s_waitcnt vmcnt({per})")
        a("s_barrier")
        a("s_waitcnt vmcnt(0)")
        a("s_barrier")
        OK = a.label("INITOK")
        a(f"v_readfirstlane_b32 s{sT5}, v14")
        a("s_nop 0")
        a(f"s_cmp_ge_u32 s{sT5}, {NINIT}")
        a(f"s_cbranch_scc1 {OK}")
        self.poll(sDBG, 0, NINIT, "init")
        a(f"{OK}:")

    def wphi_issue(self):
        a = self.a
        a(f"s_lshl_b32 s{sA}, s{sG}, 2")
        a(f"s_add_u32 s{sA}, s{sA}, s{sCW}")
        a(f"s_mul_i32 s{sA}, s{sA}, 800")
        a("v_lshlrev_b32 v2, 3, v1")
        a("v_add_u32 v3, 512, v2")
        a("v_cmp_gt_u32 vcc, 36, v1")
        a("v_mov_b32 v9, 0x40000000")
        a(f"buffer_load_dwordx2 v[100:101], v2, {sr(sPHI)}, s{sA} offen")
        a("v_cndmask_b32 v3, v9, v3, vcc")
        a(f"buffer_load_dwordx2 v[104:105], v3, {sr(sPHI)}, s{sA} offen")
    def wphi_write(self):
        a = self.a
        a(f"s_mul_i32 s{sA}, s{sCW}, 1600")
        a(f"s_lshr_b32 s{sB}, s{sCW}, 1")
        a(f"s_mul_i32 s{sB}, s{sB}, 1280")
        a(f"s_add_u32 s{sA}, s{sA}, s{sB}")
        a(f"s_add_u32 s{sA}, s{sA}, {WPHI}")
        a(f"v_lshl_add_u32 v2, v1, 4, s{sA}")
        a(f"s_and_b32 s{sB}, s{sCW}, 1")
        a(f"s_cmp_eq_u32 s{sB}, 0")
        a(f"s_cselect_b32 s{sB}, -1, 0")
        a(f"s_not_b32 s{sC}, s{sB}")
        a("s_waitcnt vmcnt(0)")
        for b in (100, 104):
            a(f"v_and_b32 v{b+2}, s{sC}, v{b}")
            a(f"v_and_b32 v{b+3}, s{sC}, v{b+1}")
            a(f"v_and_b32 v{b}, s{sB}, v{b}")
            a(f"v_and_b32 v{b+1}, s{sB}, v{b+1}")
        a("ds_write_b128 v2, v[100:103]")
        a("v_cmp_gt_u32 vcc, 36, v1")
        a(f"s_and_saveexec_b64 s[{sEX}:{sEX+1}], vcc")
        a("ds_write_b128 v2, v[104:107] offset:1024")
        a("s_mov_b64 exec, 0xfffff")
        a(f"s_mul_i32 s{sA}, s{sCW}, 320")
        a(f"s_add_u32 s{sA}, s{sA}, {WPHI+3200}")
        a(f"v_lshl_add_u32 v2, v1, 4, s{sA}")
        for r in range(108, 112): a(f"v_mov_b32 v{r}, 0")
        a("ds_write_b128 v2, v[108:111]")
        a(f"s_mov_b64 exec, s[{sEX}:{sEX+1}]")

    def compute(self, kv, tag):
        a = self.a
        NT = 5 if kv else 3
        RSW = 320 if kv else 192
        SLOT = 16384 + (5 if kv else 3) * 4096
        ACCR = 16
        FX = [96, 120]; FA = [100, 124]
        vXA, vWA = 4, 8
        self.wphi_issue()
        a("v_and_b32 v2, 31, v1")
        a("v_bfe_u32 v3, v1, 1, 3")
        a("v_lshrrev_b32 v9, 5, v1")
        a("v_xor_b32 v3, v3, v9")
        a(f"s_lshl_b32 s{sA}, s{sCW}, 12")
        a("v_lshlrev_b32 v2, 7, v2")
        a("v_lshl_add_u32 v2, v3, 4, v2")
        a(f"v_add_u32 v{vXA}, s{sA}, v2")
        for k in range(1, 4): a(f"v_xor_b32 v{vXA+k}, {32*k}, v{vXA}")
        self.trlane(10, 11, 12, 9)
        a("v_lshl_add_u32 v11, v9, 3, v11")
        a(f"v_mul_u32_u24 v11, {RSW}, v11")
        a("v_lshl_add_u32 v11, v10, 5, v11")
        a("v_lshl_add_u32 v11, v12, 3, v11")
        a(f"v_add_u32 v{vWA}, 16384, v11")
        for r in range(ACCR, ACCR + 16 * NT): a(f"v_mov_b32 v{r}, 0")
        self.wphi_write()
        for r in range(FX[1], FX[1] + 4 + 4 * NT): a(f"v_mov_b32 v{r}, 0")
        a(f"s_mov_b32 s{sIT}, 0")
        a(f"s_mov_b32 s{sSLOT}, 0")
        a("s_waitcnt lgkmcnt(0)")
        def reads(buf, ks):
            out = [f"ds_read_b128 {vr(FX[buf],4)}, v{vXA+ks}"]
            for t in range(NT):
                for j in range(2):
                    out.append(f"ds_read_b64_tr_b16 {vr(FA[buf]+4*t+2*j,2)}, v{vWA} offset:{(16*ks+4*j)*RSW+64*t}")
            return out
        def step(mb, rb, ks, waited):
            rd = reads(rb, ks) if rb is not None else []
            plan = [3, 3, 3, 2, 0] if NT == 5 else [3, 2, 2]
            older = 1 + 2 * NT; new = 0; pos = 0
            for t in range(NT):
                if not waited:
                    left = older - (1 + 2 * (t + 1))
                    a(f"s_waitcnt lgkmcnt({left + new})")
                a(f"v_mfma_f32_32x32x16_bf16 {vr(ACCR+16*t,16)}, {vr(FA[mb]+4*t,4)}, {vr(FX[mb],4)}, {vr(ACCR+16*t,16)}")
                for k in range(plan[t]):
                    if pos < len(rd): a(rd[pos]); pos += 1; new += 1
        L = f"L_CP_{tag}"
        self.align8()
        a(f"{L}:")
        a("s_barrier")
        if self.stamps:
            S = a.label("NOST")
            a(f"s_cmp_eq_u32 s{sIT}, 0")
            a(f"s_cbranch_scc0 {S}")
            self.st(1)
            a(f"{S}:")
            self.align8()
        step(1, 0, 0, True)
        step(0, 1, 1, False)
        step(1, 0, 2, False)
        step(0, 1, 3, False)
        a(f"s_add_u32 s{sSLOT}, s{sSLOT}, 1")
        a(f"s_and_b32 s{sSLOT}, s{sSLOT}, 3")
        a(f"s_cmp_eq_u32 s{sSLOT}, 0")
        a(f"s_cselect_b32 s{sA}, {(-3*SLOT) & 0xffffffff}, {0}")
        a(f"s_cselect_b32 s{sB}, 0, {SLOT}")
        a(f"s_add_u32 s{sA}, s{sA}, s{sB}")
        for k in range(5): a(f"v_add_u32 v{vXA+k}, s{sA}, v{vXA+k}")
        a(f"s_add_u32 s{sIT}, s{sIT}, 1")
        a(f"s_cmp_lt_u32 s{sIT}, 10")
        if kv: a("s_waitcnt lgkmcnt(0)")
        else: a("s_waitcnt vmcnt(0) lgkmcnt(0)")
        a(f"s_cbranch_scc1 {L}")
        step(1, None, 0, True)
        self.st(2)
        a("s_nop 7")
        a("s_nop 1")
        KB = 144
        for s in range(5):
            if s == 4: a("s_nop 7")
            base = ACCR + 16 * (s >> 1) + 8 * (s & 1)
            for q in range(4):
                a(f"v_cvt_pk_bf16_f32 v{KB+4*s+q}, v{base+2*q}, v{base+2*q+1}")
        a(f"s_mul_i32 s{sA}, s{sCW}, 3072")
        a(f"v_lshl_add_u32 v2, v1, 4, s{sA}")
        for s in range(3):
            a(f"ds_write_b128 v2, {vr(KB+8+4*s,4)} offset:{HAND+1024*s}")
        if kv:
            a("v_and_b32 v2, 31, v1")
            a(f"s_lshl_b32 s{sA}, s{sCW}, 5")
            a(f"v_add_u32 v2, s{sA}, v2")
            a(f"v_mul_u32_u24 v2, {VS}, v2")
            a("v_lshrrev_b32 v3, 5, v1")
            a("v_lshl_add_u32 v3, v3, 3, v2")
            a("s_nop 3")
            for vq in range(10):
                base = ACCR + 32 + 8 + 4 * vq
                t = 164 + 2 * vq
                a(f"v_cvt_pk_bf16_f32 v{t}, v{base}, v{base+1}")
                a(f"v_cvt_pk_bf16_f32 v{t+1}, v{base+2}, v{base+3}")
                a(f"ds_write_b64 v3, {vr(t,2)} offset:{VIMG+16*vq}")
            a("v_mov_b32 v184, 0x3f80")
            a("v_mov_b32 v185, 0")
            a(f"ds_write_b64 v2, v[184:185] offset:{VIMG+160}")
        a("s_waitcnt lgkmcnt(0)")

    def phi(self):
        a = self.a
        KB = 144
        A1, A2, P1, P2 = 116, 128, 164, 180
        a("s_barrier")
        H = a.label("NOHAND")
        a(f"s_cmp_eq_u32 s{sP}, 0")
        a(f"s_cbranch_scc1 {H}")
        a(f"s_mul_i32 s{sA}, s{sCW}, 3072")
        a(f"v_lshl_add_u32 v2, v1, 4, s{sA}")
        for s in range(3):
            a(f"ds_read_b128 {vr(KB+4*s,4)}, v2 offset:{HAND+1024*s}")
        a(f"{H}:")
        self.trlane(10, 11, 12, 9)
        a("v_lshl_add_u32 v11, v9, 2, v11")
        a("v_mul_u32_u24 v11, 80, v11")
        a("v_lshl_add_u32 v11, v10, 5, v11")
        a("v_lshl_add_u32 v11, v12, 3, v11")
        a(f"s_mul_i32 s{sA}, s{sP}, 3840")
        a(f"s_add_u32 s{sA}, s{sA}, {WPHI}")
        a(f"v_add_u32 v11, s{sA}, v11")
        for s in range(3):
            for j in range(2):
                a(f"ds_read_b64_tr_b16 {vr(A1+4*s+2*j,2)}, v11 offset:{(16*s+8*j)*80}")
        for s in range(3):
            for j in range(2):
                a(f"ds_read_b64_tr_b16 {vr(A2+4*s+2*j,2)}, v11 offset:{(16*s+8*j)*80+64}")
        a("s_waitcnt lgkmcnt(6)")
        for s in range(3):
            a(f"v_mfma_f32_32x32x16_bf16 {vr(P1,16)}, {vr(A1+4*s,4)}, {vr(KB+4*s,4)}, {'0' if s == 0 else vr(P1,16)}")
        a("s_waitcnt lgkmcnt(0)")
        for s in range(3):
            a(f"v_mfma_f32_32x32x16_bf16 {vr(P2,16)}, {vr(A2+4*s,4)}, {vr(KB+4*s,4)}, {'0' if s == 0 else vr(P2,16)}")
        a("s_nop 7")
        a("s_nop 0")
        p = [P1 + i for i in range(20)]
        assert P2 == P1 + 16
        MX, MN = 236, 237
        a(f"v_max3_f32 v{MX}, v{p[0]}, v{p[1]}, v{p[2]}")
        a(f"v_min3_f32 v{MN}, v{p[0]}, v{p[1]}, v{p[2]}")
        for i in range(3, 15, 2):
            a(f"v_max3_f32 v{MX}, v{MX}, v{p[i]}, v{p[i+1]}")
            a(f"v_min3_f32 v{MN}, v{MN}, v{p[i]}, v{p[i+1]}")
        for i in (15, 17):
            a(f"v_max3_f32 v{MX}, v{MX}, v{p[i]}, v{p[i+1]}")
            a(f"v_min3_f32 v{MN}, v{MN}, v{p[i]}, v{p[i+1]}")
        a(f"v_max_f32 v{MX}, v{MX}, v{p[19]}")
        a(f"v_min_f32 v{MN}, v{MN}, v{p[19]}")
        a(f"s_mov_b32 s{sA}, {f32(math.log2(math.e))}")
        a(f"v_mul_f32 v{MX}, s{sA}, v{MX}")
        a(f"v_mul_f32 v{MN}, s{sA}, v{MN}")
        EP, EM = 96, 196
        for i in range(20):
            a(f"v_fma_f32 v{EP+i}, v{p[i]}, s{sA}, -v{MX}")
            a(f"v_fma_f32 v{EM+i}, -v{p[i]}, s{sA}, v{MN}")
        for i in range(20):
            a(f"v_exp_f32 v{EP+i}, v{EP+i}")
            a(f"v_exp_f32 v{EM+i}, v{EM+i}")
        S0, S1, S2, S3 = 238, 239, 240, 241
        a(f"v_add_f32 v{S0}, v{EP}, v{EP+1}")
        a(f"v_add_f32 v{S1}, v{EM}, v{EM+1}")
        a(f"v_add_f32 v{S2}, v{EP+2}, v{EP+3}")
        a(f"v_add_f32 v{S3}, v{EM+2}, v{EM+3}")
        for i in range(4, 20, 2):
            a(f"v_add_f32 v{S0}, v{S0}, v{EP+i}")
            a(f"v_add_f32 v{S1}, v{S1}, v{EM+i}")
            a(f"v_add_f32 v{S2}, v{S2}, v{EP+i+1}")
            a(f"v_add_f32 v{S3}, v{S3}, v{EM+i+1}")
        a(f"v_add_f32 v{S0}, v{S0}, v{S2}")
        a(f"v_add_f32 v{S1}, v{S1}, v{S3}")
        a(f"v_rcp_f32 v{S0}, v{S0}")
        a(f"v_rcp_f32 v{S1}, v{S1}")
        a("s_nop 0")
        PF = 216
        for i in range(0, 20, 2):
            a(f"v_mul_f32 v{EP+i}, v{S0}, v{EP+i}")
            a(f"v_mul_f32 v{EP+i+1}, v{S0}, v{EP+i+1}")
            a(f"v_mul_f32 v{EM+i}, v{S1}, v{EM+i}")
            a(f"v_mul_f32 v{EM+i+1}, v{S1}, v{EM+i+1}")
            a(f"v_cvt_pk_bf16_f32 v{PF+i//2}, v{EP+i}, v{EP+i+1}")
            a(f"v_cvt_pk_bf16_f32 v{PF+10+i//2}, v{EM+i}, v{EM+i+1}")

    def kvpart(self):
        a = self.a
        PF = 216
        a("v_and_b32 v2, 31, v1")
        a(f"s_lshl_b32 s{sA}, s{sCW}, 5")
        a(f"v_add_u32 v2, s{sA}, v2")
        a(f"v_mul_u32_u24 v2, {PS}, v2")
        a("v_lshrrev_b32 v3, 5, v1")
        a("v_mul_u32_u24 v3, 80, v3")
        a(f"s_mul_i32 s{sA}, s{sP}, 160")
        a(f"s_add_u32 s{sA}, s{sA}, {PHIMG}")
        a(f"v_add3_u32 v2, v2, v3, s{sA}")
        for c in range(5):
            a(f"ds_write_b128 v2, {vr(PF+4*c,4)} offset:{16*c}")
        self.trlane(10, 11, 12, 9)
        a("v_lshl_add_u32 v11, v9, 3, v11")
        a("v_lshl_add_u32 v13, v10, 2, v12")
        a(f"s_mul_i32 s{sA}, s{sCW}, 40")
        a(f"v_lshl_add_u32 v14, v13, 3, s{sA}")
        a("v_mov_b32 v15, 160")
        a("v_cmp_gt_u32 vcc, 5, v13")
        a(f"v_mul_u32_u24 v4, {VS}, v11")
        a(f"v_mul_u32_u24 v5, {PS}, v11")
        a("v_cndmask_b32 v14, v15, v14, vcc")
        a("v_add_u32 v4, v4, v14")
        a(f"s_mul_i32 s{sA}, s{sCW}, 80")
        a(f"s_lshl_b32 s{sB}, s{sP}, 6")
        a(f"s_add_u32 s{sA}, s{sA}, s{sB}")
        a(f"s_add_u32 s{sA}, s{sA}, {PHIMG}")
        a(f"v_lshl_add_u32 v5, v13, 3, v5")
        a(f"v_add_u32 v5, s{sA}, v5")
        a("v_and_b32 v2, 31, v1")
        a("v_lshlrev_b32 v6, 2, v2")
        a("v_mul_u32_u24 v3, 768, v9")
        a("v_add_u32 v6, v6, v3")
        a(f"s_cmp_eq_u32 s{sP}, 0")
        a(f"s_cselect_b32 s{sA}, 32, 8")
        a("v_mov_b32 v15, 0x40000000")
        a(f"v_cmp_gt_u32 vcc, s{sA}, v2")
        a(f"s_lshl_b32 s{sB}, s{sG}, 2")
        a(f"s_add_u32 s{sB}, s{sB}, s{sCW}")
        a("v_cndmask_b32 v6, v15, v6, vcc")
        a("v_cmp_gt_u32 vcc, 32, v1")
        a(f"s_mul_i32 s{sB}, s{sB}, 4032")
        a(f"s_lshl_b32 s{sA}, s{sP}, 7")
        a("v_cndmask_b32 v7, v15, v6, vcc")
        a(f"s_add_u32 s{sB}, s{sB}, s{sA}")
        if ACC: a(f"s_add_u32 s{sB}, s{sB}, {ACC}")
        a("s_waitcnt lgkmcnt(0)")
        a("s_barrier")
        FA, FB, D = 16, 48, 80
        def rd(ks):
            for j in range(2):
                a(f"ds_read_b64_tr_b16 {vr(FA+4*ks+2*j,2)}, v4 offset:{VIMG+(16*ks+4*j)*VS}")
            for j in range(2):
                a(f"ds_read_b64_tr_b16 {vr(FB+4*ks+2*j,2)}, v5 offset:{(16*ks+4*j)*PS}")
        for ks in range(3): rd(ks)
        for ks in range(8):
            left = min(2, 7 - ks) * 4
            a(f"s_waitcnt lgkmcnt({left})")
            a(f"v_mfma_f32_32x32x16_bf16 {vr(D,16)}, {vr(FA+4*ks,4)}, {vr(FB+4*ks,4)}, {'0' if ks == 0 else vr(D,16)}")
            if ks + 3 < 8: rd(ks + 3)
        a("s_nop 7")
        a("s_nop 3")
        for j in range(3):
            for i in range(4):
                v = 6 if (j < 2 or i == 0) else 7
                a(f"buffer_atomic_add_f32 v{D+4*j+i}, v{v}, {sr(sWS)}, s{sB} offen offset:{(8*j+i)*192}")
        self.st(4)
        a("s_waitcnt vmcnt(0)")
        a("s_barrier")
        self.st(5)
        S = a.label("NOKVSIG")
        a(f"s_cmp_eq_u32 s{sWAVE}, 0")
        a(f"s_cbranch_scc0 {S}")
        a(f"s_lshl_b32 s{sA}, s{sG}, 8")
        a(f"s_add_u32 s{sA}, s{sA}, {KVC}")
        self.signal(sWS, f"s{sA}")
        a(f"{S}:")

    def wo_dma(self):
        a = self.a
        V = 244
        mul = (65536 + 9) // 10
        for q in range(320): assert (q * mul) >> 16 == q // 10
        for i in range(5):
            comp = 1024 * i if i < 4 else 0
            a(f"v_add_u32 v2, {64*i}, v1")
            a(f"v_mul_u32_u24 v3, {mul}, v2")
            a("v_lshrrev_b32 v3, 16, v3")
            a("v_mul_u32_u24 v13, 10, v3")
            a("v_sub_u32 v2, v2, v13")
            a("v_mul_u32_u24 v3, 1280, v3")
            a(f"v_lshl_add_u32 v{V+i}, v2, 4, v3")
            if comp: a(f"v_subrev_u32 v{V+i}, {comp}, v{V+i}")
        a(f"s_lshr_b32 s{sA}, s{sJ}, 2")
        a(f"s_mul_i32 s{sA}, s{sA}, 160")
        a(f"s_mul_i32 s{sB}, s{sWAVE}, {32*1280}")
        a(f"s_add_u32 s{sA}, s{sA}, s{sB}")
        a(f"s_mul_i32 s{sB}, s{sWAVE}, 5120")
        a(f"s_add_u32 s{sB}, s{sB}, {WOIMG}")
        E = a.label("WOEND")
        for rep in range(3):
            if rep == 2:
                a(f"s_cmp_ge_u32 s{sWAVE}, 4")
                a(f"s_cbranch_scc1 {E}")
            a(f"s_mov_b32 m0, s{sB}")
            a("s_nop 0")
            for i in range(4):
                a(f"buffer_load_dwordx4 v{V+i}, {sr(sWO)}, s{sA} offen offset:{1024*i} lds")
            a("s_add_u32 m0, m0, 4096")
            a("s_nop 0")
            a(f"buffer_load_dwordx4 v{V+4}, {sr(sWO)}, s{sA} offen lds")
            if rep < 2:
                a(f"s_add_u32 s{sA}, s{sA}, {8*32*1280}")
                a(f"s_add_u32 s{sB}, s{sB}, {8*5120}")
        a(f"{E}:")

    def ostep(self):
        a = self.a
        PF = 216
        a("v_mov_b32 v4, 0"); a("v_mov_b32 v5, 0")
        a("v_lshlrev_b32 v2, 3, v1")
        a("s_mov_b64 exec, 0xffff")
        a(f"v_add_u32 v2, {KVZERO}, v2")
        a("ds_write_b64 v2, v[4:5]")
        a("s_mov_b64 exec, -1")
        mul = (65536 + 9) // 10
        for q in range(840): assert (q * mul) >> 16 == q // 10
        for i in range(2):
            a(f"v_add_u32 v2, {512*i}, v0")
            a(f"v_mul_u32_u24 v3, {mul}, v2")
            a("v_lshrrev_b32 v3, 16, v3")
            a("v_mul_u32_u24 v3, 32, v3")
            a(f"v_lshl_add_u32 v{6+i}, v2, 4, v3")
        a("v_cmp_gt_u32 vcc, 328, v0")
        a("v_mov_b32 v15, 0x40000000")
        a("v_lshlrev_b32 v8, 3, v0")
        a("v_cndmask_b32 v7, v15, v7, vcc")
        a(f"v_add_u32 v8, {KVIMG}, v8")
        a("v_bfe_u32 v9, v1, 2, 1")
        a("v_bfe_u32 v10, v1, 3, 2")
        a("v_and_b32 v11, 3, v1")
        a("v_lshl_add_u32 v10, v10, 2, v11")
        a("v_add_u32 v11, 16, v10")
        a("v_min_u32 v11, 20, v11")
        a("v_mul_u32_u24 v12, 21, v9")
        a(f"s_mul_i32 s{sA}, s{sP}, 42")
        a(f"v_add_u32 v12, s{sA}, v12")
        a("v_add_u32 v10, v10, v12")
        a("v_add_u32 v11, v11, v12")
        a("v_mul_u32_u24 v10, 80, v10")
        a("v_mul_u32_u24 v11, 80, v11")
        a("v_lshrrev_b32 v12, 5, v1")
        a("v_cmp_eq_u32 vcc, v12, v9")
        a("v_mov_b32 v13, 6720")
        a(f"s_mul_i32 s{sB}, s{sG}, {4*4032}")
        a("v_cndmask_b32 v10, v13, v10, vcc")
        a("v_cndmask_b32 v11, v13, v11, vcc")
        a(f"v_add_u32 v10, {KVIMG}, v10")
        a(f"v_add_u32 v11, {KVIMG}, v11")
        if ACC: a(f"s_add_u32 s{sB}, s{sB}, {ACC}")
        a(f"s_lshl_b32 s{sC}, s{sRB}, 2")
        a(f"s_add_u32 s{sC}, s{sC}, s{sCW}")
        a(f"s_lshl_b32 s{sC}, s{sC}, 3")
        a(f"s_add_u32 s{sC}, s{sC}, s{sG}")
        a(f"s_mul_i32 s{sC}, s{sC}, 5120")
        a(f"s_add_u32 s{sC}, s{sC}, {OB}")
        a(f"s_lshl_b32 s{sD}, s{sP}, 9")
        a(f"s_add_u32 s{sD}, s{sD}, s{sC}")
        a(f"s_add_u32 s{sD}, s{sD}, 4096")
        a(f"s_lshl_b32 s{sE}, s{sP}, 11")
        a(f"s_add_u32 s{sC}, s{sC}, s{sE}")
        a("v_lshlrev_b32 v12, 4, v1")
        a("v_lshlrev_b32 v13, 3, v1")
        S = a.label("NOKVPOLL")
        a(f"s_cmp_eq_u32 s{sWAVE}, 0")
        a(f"s_cbranch_scc0 {S}")
        a(f"s_lshl_b32 s{sA}, s{sG}, 8")
        a(f"s_add_u32 s{sA}, s{sA}, {KVC}")
        self.poll(sWS, f"s{sA}", 16, "kv")
        a(f"{S}:")
        a("s_barrier")
        self.st(5)
        a(f"buffer_load_dwordx4 v[16:19], v6, {sr(sWS)}, s{sB} offen sc1")
        a(f"buffer_load_dwordx4 v[20:23], v7, {sr(sWS)}, s{sB} offen sc1")
        a("s_waitcnt vmcnt(1)")
        a("v_cvt_pk_bf16_f32 v16, v16, v17")
        a("v_cvt_pk_bf16_f32 v17, v18, v19")
        a("ds_write_b64 v8, v[16:17]")
        a("s_waitcnt vmcnt(0)")
        a("v_cvt_pk_bf16_f32 v20, v20, v21")
        a("v_cvt_pk_bf16_f32 v21, v22, v23")
        a("v_cmp_gt_u32 vcc, 328, v0")
        a(f"s_and_saveexec_b64 s[{sEX}:{sEX+1}], vcc")
        a("ds_write_b64 v8, v[20:21] offset:4096")
        a(f"s_mov_b64 exec, s[{sEX}:{sEX+1}]")
        a("s_waitcnt lgkmcnt(0)")
        a("s_barrier")
        FA, FB, TA, TB = 24, 44, 64, 80
        for kk in range(5): a(f"ds_read_b128 {vr(FB+4*kk,4)}, v11 offset:{16*kk}")
        for kk in range(5): a(f"ds_read_b128 {vr(FA+4*kk,4)}, v10 offset:{16*kk}")
        for kk in range(5):
            a(f"s_waitcnt lgkmcnt({9-kk})")
            a(f"v_mfma_f32_32x32x16_bf16 {vr(TB,16)}, {vr(FB+4*kk,4)}, {vr(PF+4*kk,4)}, {'0' if kk == 0 else vr(TB,16)}")
        for kk in range(5):
            a(f"s_waitcnt lgkmcnt({4-kk})")
            a(f"v_mfma_f32_32x32x16_bf16 {vr(TA,16)}, {vr(FA+4*kk,4)}, {vr(PF+4*kk,4)}, {'0' if kk == 0 else vr(TA,16)}")
        a("s_nop 2")
        a(f"v_add_f32 v14, {f32(1e-6)}, v{TB+4}")
        a("v_rcp_f32 v14, v14")
        a("s_nop 0")
        for i in range(4): a(f"v_mul_f32 v{TB+i}, v14, v{TB+i}")
        a(f"v_cvt_pk_bf16_f32 v104, v{TB}, v{TB+1}")
        a(f"v_cvt_pk_bf16_f32 v105, v{TB+2}, v{TB+3}")
        a(f"buffer_store_dwordx2 v[104:105], v13, {sr(sWS)}, s{sD} offen sc1")
        a("s_nop 0")
        for b in range(2):
            for i in range(8): a(f"v_mul_f32 v{TA+8*b+i}, v14, v{TA+8*b+i}")
            for i in range(4): a(f"v_cvt_pk_bf16_f32 v{96+4*b+i}, v{TA+8*b+2*i}, v{TA+8*b+2*i+1}")
            a(f"buffer_store_dwordx4 {vr(96+4*b,4)}, v12, {sr(sWS)}, s{sC} offen offset:{1024*b} sc1")
        self.st(6)
        a("s_waitcnt vmcnt(0)")
        a("s_barrier")
        S = a.label("NOOSIG")
        a(f"s_cmp_eq_u32 s{sWAVE}, 0")
        a(f"s_cbranch_scc0 {S}")
        a(f"s_lshl_b32 s{sA}, s{sRB}, 8")
        a(f"s_add_u32 s{sA}, s{sA}, {OC}")
        self.signal(sWS, f"s{sA}")
        a(f"{S}:")

    def final(self):
        a = self.a
        a("v_lshrrev_b32 v2, 5, v1")
        a("v_bfe_u32 v3, v1, 4, 1")
        a("v_and_b32 v9, 15, v1")
        a("v_lshlrev_b32 v4, 10, v2")
        a("v_lshl_add_u32 v4, v3, 9, v4")
        a("v_lshl_add_u32 v4, v9, 4, v4")
        a("v_mul_u32_u24 v5, 5120, v2")
        a("v_lshl_add_u32 v5, v3, 8, v5")
        a("v_lshl_add_u32 v5, v9, 3, v5")
        a("v_bfe_u32 v10, v1, 2, 2")
        a("v_and_b32 v11, 3, v1")
        a("v_mul_u32_u24 v12, 20, v3")
        a("v_add_u32 v12, v12, v10")
        a("v_lshl_add_u32 v6, v2, 3, v12")
        a("v_mul_u32_u24 v6, 160, v6")
        a("v_lshl_add_u32 v6, v11, 3, v6")
        a("v_mul_u32_u24 v7, 80, v2")
        a("v_add3_u32 v7, v7, v12, 16")
        a("v_mul_u32_u24 v7, 160, v7")
        a("v_lshl_add_u32 v7, v11, 3, v7")
        a(f"s_mul_i32 s{sA}, s{sP}, 51200")
        a(f"s_add_u32 s{sA}, s{sA}, {WOIMG}")
        a(f"v_add_u32 v6, s{sA}, v6")
        a(f"v_add_u32 v7, s{sA}, v7")
        a(f"s_and_b32 s{sA}, s{sJ}, 3")
        a(f"s_lshl_b32 s{sB}, s{sXCD}, 2")
        a(f"s_add_u32 s{sA}, s{sA}, s{sB}")
        a(f"s_lshr_b32 s{sF}, s{sA}, 1")
        a(f"s_lshl_b32 s{sB}, s{sA}, 1")
        a(f"s_lshr_b32 s{sC}, s{sCW}, 1")
        a(f"s_add_u32 s{sB}, s{sB}, s{sC}")
        a(f"s_lshl_b32 s{sB}, s{sB}, 1")
        a(f"s_add_u32 s{sB}, s{sB}, s{sP}")
        a(f"s_mul_i32 s{sB}, s{sB}, {4*5120}")
        a(f"s_add_u32 s{sB}, s{sB}, {OB}")
        a(f"s_and_b32 s{sC}, s{sCW}, 1")
        a(f"s_lshl_b32 s{sD}, s{sC}, 7")
        a(f"s_add_u32 s{sD}, s{sD}, s{sB}")
        a(f"s_add_u32 s{sD}, s{sD}, 4096")
        a(f"s_lshl_b32 s{sC}, s{sC}, 8")
        a(f"s_add_u32 s{sB}, s{sB}, s{sC}")
        a(f"s_lshl_b32 s{sA}, s{sA}, 2")
        a(f"s_add_u32 s{sA}, s{sA}, s{sCW}")
        a(f"s_mul_i32 s{sA}, s{sA}, {16*2560}")
        a(f"s_lshr_b32 s{sC}, s{sJ}, 2")
        a(f"s_mul_i32 s{sC}, s{sC}, 160")
        a(f"s_add_u32 s{sE}, s{sA}, s{sC}")
        a("v_mul_u32_u24 v8, 2560, v9")
        a("v_lshrrev_b32 v2, 4, v1")
        a("v_lshl_add_u32 v8, v2, 3, v8")
        a(f"s_mul_i32 s{sA}, s{sCW}, 5120")
        a(f"s_add_u32 s{sA}, s{sA}, {RED}")
        a(f"v_lshl_add_u32 v14, v1, 4, s{sA}")
        S = a.label("NOOPOLL")
        a(f"s_cmp_eq_u32 s{sWAVE}, 0")
        a(f"s_cbranch_scc0 {S}")
        a(f"s_lshl_b32 s{sA}, s{sF}, 8")
        a(f"s_add_u32 s{sA}, s{sA}, {OC}")
        self.poll(sWS, f"s{sA}", 8, "o")
        a(f"{S}:")
        a("s_waitcnt vmcnt(0) lgkmcnt(0)")
        a("s_barrier")
        self.st(8)
        O, AC = 16, 56
        FR = [76, 96]
        steps = []
        n = 0
        for gl in range(4):
            if gl: a(f"s_add_u32 s{sB}, s{sB}, 5120")
            for p in range(2):
                a(f"buffer_load_dwordx4 {vr(O+4*n,4)}, v4, {sr(sWS)}, s{sB} offen offset:{2048*p} sc1")
                steps.append((O + 4 * n, 6, gl * 12800 + p * 6400, 640, 1)); n += 1
        for gp in range(2):
            if gp: a(f"s_add_u32 s{sD}, s{sD}, 10240")
            for j in range(2):
                a(f"buffer_load_dwordx2 {vr(O+4*n+2*j,2)}, v5, {sr(sWS)}, s{sD} offen offset:{512*j} sc1")
            steps.append((O + 4 * n, 7, gp * 25600, 6400, 2)); n += 1
        def rd(k):
            _, ad, off, js, _ = steps[k]
            return [f"ds_read_b64_tr_b16 {vr(FR[k&1]+4*t+2*j,2)}, v{ad} offset:{off+js*j+32*t}" for t in range(5) for j in range(2)]
        for s in rd(0): a(s)
        total = 12; done = 0
        for k in range(10):
            done += steps[k][4]
            a(f"s_waitcnt vmcnt({total-done})")
            nx = rd(k + 1) if k < 9 else []
            new = 0
            for t in range(5):
                a(f"s_waitcnt lgkmcnt({10 - 2*(t+1) + new})")
                a(f"v_mfma_f32_16x16x32_bf16 {vr(AC+4*t,4)}, {vr(FR[k&1]+4*t,4)}, {vr(steps[k][0],4)}, {'0' if k == 0 else vr(AC+4*t,4)}")
                for q in range(2):
                    if nx: a(nx.pop(0)); new += 1
        self.st(9)
        Z = a.label("FINLO")
        a(f"s_cmp_eq_u32 s{sP}, 0")
        a(f"s_cbranch_scc1 {Z}")
        a("s_nop 5")
        for t in range(5): a(f"ds_write_b128 v14, {vr(AC+4*t,4)} offset:{1024*t}")
        a("s_waitcnt lgkmcnt(0)")
        a("s_barrier")
        a("s_branch L_FINI")
        a(f"{Z}:")
        a("s_barrier")
        for t in range(5): a(f"ds_read_b128 {vr(76+4*t,4)}, v14 offset:{1024*t}")
        for t in range(5):
            a(f"s_waitcnt lgkmcnt({4-t})")
            for i in range(4): a(f"v_add_f32 v{AC+4*t+i}, v{AC+4*t+i}, v{76+4*t+i}")
            a(f"v_cvt_pk_bf16_f32 v{96+2*t}, v{AC+4*t}, v{AC+4*t+1}")
            a(f"v_cvt_pk_bf16_f32 v{97+2*t}, v{AC+4*t+2}, v{AC+4*t+3}")
            a(f"buffer_store_dwordx2 {vr(96+2*t,2)}, v8, {sr(sOUT)}, s{sE} offen offset:{32*t}")
        a("L_FINI:")

    def b1(self):
        a = self.a
        a(f"s_sub_u32 s{sA}, s2, 128")
        a(f"s_mul_i32 s{sB}, s{sA}, 205")
        a(f"s_lshr_b32 s{sB}, s{sB}, 10")
        for u in range(80): assert (u * 205) >> 10 == u // 5
        a(f"s_mul_i32 s{sC}, s{sB}, 5")
        a(f"s_sub_u32 s{sC}, s{sA}, s{sC}")
        a("v_lshrrev_b32 v2, 4, v1")
        a("v_and_b32 v3, 15, v1")
        a("v_lshlrev_b32 v9, 2, v2")
        a("v_xor_b32 v3, v3, v9")
        a(f"v_mul_u32_u24 v2, {16*1280}, v2")
        a("v_lshl_add_u32 v4, v3, 4, v2")
        for i in range(1, 4): a(f"v_add_u32 v{4+i}, {i*(81920-1024)}, v4")
        a(f"s_lshl_b32 s{sD}, s{sWAVE}, 8")
        a(f"s_add_u32 s{sD}, s{sD}, s{sB}")
        a(f"s_mul_i32 s{sD}, s{sD}, 1280")
        a(f"s_lshl_b32 s{sE}, s{sC}, 8")
        a(f"s_add_u32 s{sD}, s{sD}, s{sE}")
        a(f"s_lshl_b32 m0, s{sWAVE}, 12")
        a("s_nop 0")
        for i in range(4):
            a(f"buffer_load_dwordx4 v{4+i}, {sr(sBX)}, s{sD} offen offset:{1024*i} lds")
        AF = 16
        a("v_bfe_u32 v2, v1, 1, 4")
        a(f"s_lshl_b32 s{sD}, s{sCW}, 4")
        a(f"v_add_u32 v2, s{sD}, v2")
        a("v_and_b32 v3, 1, v1")
        a(f"v_mul_u32_u24 v9, s{sB}, v2")
        a("v_lshl_add_u32 v9, v3, 9, v9")
        a("v_lshl_add_u32 v10, v2, 1, v3")
        a("v_cmp_eq_u32 vcc, 1, v10")
        a("v_mov_b32 v11, 64")
        a("v_lshrrev_b32 v12, 5, v1")
        a("v_cndmask_b32 v2, v2, v11, vcc")
        a("v_cndmask_b32 v9, v9, 0, vcc")
        a("v_lshlrev_b32 v12, 7, v12")
        a("v_mul_u32_u24 v12, v2, v12")
        a("v_add_u32 v9, v9, v12")
        a("v_and_b32 v9, 2047, v9")
        a("v_cvt_f32_u32 v9, v9")
        a("v_cvt_f32_u32 v2, v2")
        a(f"v_mul_f32 v9, {f32(1/2048)}, v9")
        a(f"v_mul_f32 v2, {f32(1/128)}, v2")
        for ks in range(8):
            for e in range(0, 8, 2):
                for z in range(2):
                    k = 16 * ks + e + z
                    a(f"s_mov_b32 s{sD}, {f32(float(k))}")
                    a(f"v_fma_f32 v{10+z}, v2, s{sD}, v9")
                a("v_cos_f32 v12, v10")
                a("v_cos_f32 v13, v11")
                a("s_nop 0")
                a(f"v_cvt_pk_bf16_f32 v{AF+4*ks+e//2}, v12, v13")
        self.trlane(10, 11, 12, 9)
        a(f"s_lshl_b32 s{sD}, s{sP}, 1")
        a(f"v_xor_b32 v13, s{sD}, v11")
        a("v_lshl_add_u32 v11, v9, 3, v11")
        a("v_lshlrev_b32 v11, 8, v11")
        a("v_lshl_add_u32 v11, v10, 5, v11")
        a("v_lshl_add_u32 v11, v12, 3, v11")
        a("v_lshl_add_u32 v4, v13, 6, v11")
        a("v_xor_b32 v5, 64, v4")
        a("v_and_b32 v2, 31, v1")
        a("v_lshlrev_b32 v6, 2, v2")
        a("v_mul_u32_u24 v3, 81920, v9")
        a("v_add_u32 v6, v6, v3")
        a(f"s_mul_i32 s{sD}, s{sCW}, {16*40960}")
        a(f"s_lshl_b32 s{sC}, s{sC}, 2")
        a(f"s_lshl_b32 s{sE}, s{sP}, 1")
        a(f"s_add_u32 s{sC}, s{sC}, s{sE}")
        a(f"s_lshl_b32 s{sC}, s{sC}, 11")
        a(f"s_add_u32 s{sD}, s{sD}, s{sC}")
        a(f"s_lshl_b32 s{sB}, s{sB}, 7")
        a(f"s_add_u32 s{sD}, s{sD}, s{sB}")
        a(f"s_add_u32 s{sD}, s{sD}, {UB}")
        a("s_waitcnt vmcnt(0)")
        a("s_barrier")
        XF, D = 48, 112
        order = [(nb, ks) for nb in range(2) for ks in range(8)]
        def rd(k):
            nb, ks = order[k]
            for j in range(2):
                a(f"ds_read_b64_tr_b16 {vr(XF+32*nb+4*ks+2*j,2)}, v{4+nb} offset:{(16*ks+4*j)*256}")
        for k in range(6): rd(k)
        for k in range(16):
            nb, ks = order[k]
            a(f"s_waitcnt lgkmcnt({2*min(5, 15-k)})")
            a(f"v_mfma_f32_32x32x16_bf16 {vr(D+16*nb,16)}, {vr(AF+4*ks,4)}, {vr(XF+32*nb+4*ks,4)}, {'0' if ks == 0 else vr(D+16*nb,16)}")
            if k + 6 < 16: rd(k + 6)
        a("s_nop 1")
        for nb in range(2):
            if nb == 1: a("s_nop 0")
            for j in range(4):
                for ii in range(2):
                    t = 16 + 8 * nb + 2 * j + ii
                    a(f"v_cvt_pk_bf16_f32 v{t}, v{D+16*nb+4*j+2*ii}, v{D+16*nb+4*j+2*ii+1}")
                    a(f"s_add_u32 s{sE}, s{sD}, {(4*j+ii)*40960 + nb*2048}")
                    a(f"buffer_store_dword v{t}, v6, {sr(sWS)}, s{sE} offen sc1")
        a("s_barrier")

    def b2(self):
        a = self.a
        S = a.label("NOB1POLL")
        a(f"s_cmp_eq_u32 s{sWAVE}, 0")
        a(f"s_cbranch_scc0 {S}")
        a(f"s_movk_i32 s{sT2}, 128")
        self.poll(sDBG, f"s{sT2}", NB1, "b1")
        a(f"{S}:")
        a("s_barrier")
        UD = 16
        a("v_and_b32 v2, 31, v1")
        a("v_lshrrev_b32 v9, 5, v1")
        a("v_lshlrev_b32 v4, 2, v2")
        a("v_lshl_add_u32 v4, v9, 9, v4")
        a(f"s_mul_i32 s{sT2}, s{sA}, 40960")
        a(f"s_lshl_b32 s{sT3}, s{sWAVE}, 11")
        a(f"s_add_u32 s{sT2}, s{sT2}, s{sT3}")
        a(f"s_add_u32 s{sT2}, s{sT2}, {UB}")
        for tl in range(3):
            if tl == 2:
                a(f"s_cmp_lt_u32 s{sWAVE}, 4")
                a(f"s_cselect_b32 s{sT3}, {8*2048}, 0")
                a(f"s_add_u32 s{sT2}, s{sT2}, s{sT3}")
            elif tl == 1:
                a(f"s_add_u32 s{sT2}, s{sT2}, {8*2048}")
            for ks in range(2):
                for e4 in range(4):
                    a(f"buffer_load_dword v{UD+8*tl+4*ks+e4}, v4, {sr(sWS)}, s{sT2} offen offset:{1024*ks+128*e4} sc1")
        M2 = 40
        a("v_bfe_u32 v3, v1, 1, 3")
        a(f"v_add_u32 v3, s{sB}, v3")
        a(f"v_lshl_add_u32 v3, v3, 7, s{sC}")
        a("v_cvt_f32_u32 v3, v3")
        a(f"v_mul_f32 v3, {f32(1/2048)}, v3")
        a("v_and_b32 v5, 1, v1")
        a("v_cvt_f32_u32 v5, v5")
        a(f"v_mul_f32 v5, {f32(0.25)}, v5")
        a("v_lshlrev_b32 v6, 2, v9")
        a("v_cvt_f32_u32 v6, v6")
        a("v_fma_f32 v5, v3, v6, v5")
        for ks in range(2):
            for e4 in range(4):
                a(f"s_mov_b32 s{sT3}, {f32(float(8*ks+e4))}")
                a(f"v_fma_f32 v10, v3, s{sT3}, v5")
                a(f"v_subrev_f32 v11, s{sF}, v10")
                a("v_cos_f32 v10, v10")
                a("v_cos_f32 v11, v11")
                a("s_nop 0")
                a(f"v_mul_f32 v10, s{sD}, v10")
                a(f"v_mul_f32 v11, s{sE}, v11")
                a(f"v_cvt_pk_bf16_f32 v{M2+4*ks+e4}, v10, v11")
        F20 = 48
        a("v_bfe_u32 v5, v1, 2, 1")
        a("v_mul_u32_u24 v5, 10, v5")
        a("v_bfe_u32 v6, v1, 1, 1")
        a("v_add_u32 v5, v5, v6")
        a("v_bfe_u32 v6, v1, 3, 2")
        a("v_lshl_add_u32 v6, v6, 1, v5")
        a("v_add_u32 v7, 8, v5")
        a("v_cvt_f32_u32 v6, v6")
        a("v_cvt_f32_u32 v7, v7")
        a(f"v_mul_f32 v6, {f32(0.05)}, v6")
        a(f"v_mul_f32 v7, {f32(0.05)}, v7")
        a("v_and_b32 v5, 1, v1")
        a("v_cvt_f32_u32 v5, v5")
        a(f"v_mul_f32 v5, {f32(0.25)}, v5")
        a("v_cmp_eq_u32 vcc, 0, v9")
        for ks in range(3):
            for jj in range(2):
                k0 = 4 * ks + jj; k1 = k0 + 2
                def par(kc): return (4.0 * (kc % 5), 0.25 if kc >= 5 else 0.0)
                d0, c0 = par(k0); d1, c1 = par(k1)
                a(f"v_mov_b32 v12, {f32(d1)}")
                a(f"v_mov_b32 v13, {f32(d0)}")
                a("v_cndmask_b32 v12, v12, v13, vcc")
                a(f"v_mov_b32 v13, {f32(c1)}")
                a(f"v_mov_b32 v14, {f32(c0)}")
                a("v_cndmask_b32 v13, v13, v14, vcc")
                a("v_sub_f32 v13, v5, v13")
                for tl in range(2):
                    st = 6 + tl
                    a(f"v_fma_f32 v10, v{st}, v12, v13")
                    for e in range(0, 4, 2):
                        a(f"v_add_f32 v11, v10, v{st}")
                        a("v_cos_f32 v14, v10")
                        a("v_cos_f32 v15, v11")
                        if e == 0: a(f"v_add_f32 v10, v11, v{st}")
                        else: a("s_nop 0")
                        dst = F20 + 12 * tl + 4 * ks + 2 * jj + e // 2
                        a(f"v_cvt_pk_bf16_f32 v{dst}, v14, v15")
                        if k1 >= 10: a(f"v_cndmask_b32 v{dst}, 0, v{dst}, vcc")
        TW = 72
        a("v_cvt_f32_u32 v5, v2")
        a(f"v_mul_f32 v5, {f32(1/640)}, v5")
        a("v_mul_u32_u24 v6, 10, v9")
        a("v_cvt_f32_u32 v6, v6")
        a("v_mul_f32 v6, v5, v6")
        for q in range(11):
            if q < 10:
                a(f"s_mov_b32 s{sT3}, {f32(float(q))}")
                a(f"v_fma_f32 v10, v5, s{sT3}, v6")
            else:
                a(f"v_mul_f32 v10, {f32(20.0)}, v5")
            a(f"v_cos_f32 v{TW+2*q}, v10")
            a(f"v_sin_f32 v{TW+2*q+1}, v10")
        F32 = 96
        a("v_cvt_f32_u32 v5, v2")
        a(f"v_mul_f32 v5, {f32(1/32)}, v5")
        a("v_lshlrev_b32 v6, 2, v9")
        a("v_cvt_f32_u32 v6, v6")
        a("v_mul_f32 v6, v5, v6")
        for ks in range(4):
            for q in range(4):
                a(f"s_mov_b32 s{sT3}, {f32(float(8*ks+q))}")
                a(f"v_fma_f32 v10, v5, s{sT3}, v6")
                a("v_cos_f32 v11, v10")
                a("v_sin_f32 v12, v10")
                a("s_nop 0")
                a(f"v_cvt_pk_bf16_f32 v{F32+4*ks+q}, v11, v12")
        DA = 112
        a(f"v_mul_u32_u24 v5, {ZS}, v2")
        a("v_lshl_add_u32 v5, v9, 3, v5")
        a(f"s_lshl_b32 s{sT3}, s{sWAVE}, 6")
        a(f"s_add_u32 s{sT3}, s{sT3}, {ZIMG}")
        a(f"v_add_u32 v5, s{sT3}, v5")
        for tl in range(3):
            a(f"s_waitcnt vmcnt({8*(2-tl)})")
            for ks in range(2):
                a(f"v_mfma_f32_32x32x16_bf16 {vr(DA+16*tl,16)}, {vr(UD+8*tl+4*ks,4)}, {vr(M2+4*ks,4)}, {'0' if ks == 0 else vr(DA+16*tl,16)}")
        a("s_nop 6")
        a(f"s_mov_b32 s{sEX}, 0xffff")
        a(f"s_mov_b32 s{sEX+1}, 0xffff")
        a(f"s_mov_b64 exec, s[{sEX}:{sEX+1}]")
        E = a.label("ZDONE")
        for tl in range(3):
            if tl == 2:
                a(f"s_cmp_ge_u32 s{sWAVE}, 4")
                a(f"s_cbranch_scc1 {E}")
            for j in range(4):
                t = 160 + 8 * tl + 2 * j
                a(f"v_cvt_pk_bf16_f32 v{t}, v{DA+16*tl+4*j}, v{DA+16*tl+4*j+1}")
                a(f"v_cvt_pk_bf16_f32 v{t+1}, v{DA+16*tl+4*j+2}, v{DA+16*tl+4*j+3}")
                a(f"ds_write_b64 v5, {vr(t,2)} offset:{512*tl+16*j}")
        a(f"{E}:")
        a("s_mov_b64 exec, -1")
        self.trlane(10, 11, 12, 9)
        a("v_lshlrev_b32 v11, 6, v11")
        a("v_lshl_add_u32 v11, v10, 5, v11")
        a("v_lshl_add_u32 v11, v12, 3, v11")
        a(f"s_mul_i32 s{sT3}, s{sWAVE}, {2*ZS}")
        a(f"s_add_u32 s{sT3}, s{sT3}, {ZIMG}")
        a(f"v_add_u32 v11, s{sT3}, v11")
        a("v_lshl_add_u32 v6, v9, 9, v11")
        a(f"v_mul_u32_u24 v7, {512 + ZS - 1280}, v9")
        a("v_add_u32 v7, v7, v11")
        a(f"s_mul_i32 s{sT3}, s{sWAVE}, {VBW}")
        a(f"s_add_u32 s{sT3}, s{sT3}, {VB}")
        a(f"v_mul_u32_u24 v8, {10*VBS}, v9")
        a("v_lshl_add_u32 v8, v2, 2, v8")
        a(f"v_add_u32 v8, s{sT3}, v8")
        a("v_bfe_u32 v12, v1, 3, 2")
        a("v_and_b32 v13, 3, v1")
        a("v_lshl_add_u32 v12, v12, 2, v13")
        a("v_min_u32 v12, 10, v12")
        a("v_bfe_u32 v13, v1, 2, 1")
        a("v_mul_u32_u24 v13, 10, v13")
        a("v_add_u32 v12, v12, v13")
        a(f"v_mul_u32_u24 v12, {VBS}, v12")
        a("v_lshl_add_u32 v12, v9, 4, v12")
        a(f"v_add_u32 v12, s{sT3}, v12")
        a("s_waitcnt lgkmcnt(0)")
        a("s_barrier")
        ZF = 16
        pad = ZS - 1280
        a(f"ds_read_b64_tr_b16 {vr(ZF,2)}, v6")
        a(f"ds_read_b64_tr_b16 {vr(ZF+2,2)}, v6 offset:256")
        a(f"ds_read_b64_tr_b16 {vr(ZF+4,2)}, v7 offset:1024")
        a(f"ds_read_b64_tr_b16 {vr(ZF+6,2)}, v6 offset:{1280+pad}")
        a(f"ds_read_b64_tr_b16 {vr(ZF+8,2)}, v11 offset:{2048+pad}")
        a(f"ds_read_b64_tr_b16 {vr(ZF+10,2)}, v11 offset:{2304+pad}")
        DB = 112
        for ks in range(3):
            a(f"s_waitcnt lgkmcnt({4-2*ks})")
            for tl in range(2):
                a(f"v_mfma_f32_32x32x16_bf16 {vr(DB+16*tl,16)}, {vr(F20+12*tl+4*ks,4)}, {vr(ZF+4*ks,4)}, {'0' if ks == 0 else vr(DB+16*tl,16)}")
        a("s_nop 7")
        a("s_nop 3")
        for q in list(range(10)) + [10]:
            src = DB + 2 * q if q < 10 else DB
            cw, sw = TW + 2 * q, TW + 2 * q + 1
            t = 160 + 3 * q
            a(f"v_mul_f32 v{t}, v{src}, v{cw}")
            a(f"v_mul_f32 v{t+1}, v{src+1}, v{cw}")
            a(f"v_fma_f32 v{t}, v{src+1}, v{sw}, v{t}")
            a(f"v_fma_f32 v{t+1}, -v{src}, v{sw}, v{t+1}")
            a(f"v_cvt_pk_bf16_f32 v{t+2}, v{t}, v{t+1}")
            if q == 10:
                a("s_mov_b32 exec_hi, 0")
                a(f"ds_write_b32 v8, v{t+2} offset:{20*VBS}")
                a("s_mov_b64 exec, -1")
            else:
                a(f"ds_write_b32 v8, v{t+2} offset:{q*VBS}")
        a(f"s_add_u32 s{sT2}, s{sB}, s{sWAVE}")
        a(f"s_lshl_b32 s{sT2}, s{sT2}, 7")
        a(f"s_add_u32 s{sT2}, s{sT2}, s{sT0}")
        a(f"s_sub_u32 s{sT3}, 2048, s{sT2}")
        a(f"s_and_b32 s{sT3}, s{sT3}, 2047")
        a(f"s_mul_i32 s{sT2}, s{sT2}, 2560")
        a(f"s_mul_i32 s{sT3}, s{sT3}, 2560")
        a("v_mul_u32_u24 v5, 40, v2")
        a("v_mul_u32_u24 v6, 20, v9")
        a("v_add_u32 v5, v5, v6")
        a(f"v_sub_u32 v6, {1280+1260}, v5")
        a("v_add_u32 v5, 1280, v5")
        a("s_waitcnt lgkmcnt(0)")
        for ks in range(4): a(f"ds_read_b128 {vr(16+4*ks,4)}, v12 offset:{32*ks}")
        DC = 144
        for ks in range(4):
            a(f"s_waitcnt lgkmcnt({3-ks})")
            a(f"v_mfma_f32_32x32x16_bf16 {vr(DC,16)}, {vr(16+4*ks,4)}, {vr(F32+4*ks,4)}, {'0' if ks == 0 else vr(DC,16)}")
        N = a.label("NOYST")
        a(f"s_cmp_ge_u32 s{sWAVE}, s{sT1}")
        a(f"s_cbranch_scc1 {N}")
        a("s_nop 7")
        a("s_nop 1")
        for i in range(5): a(f"v_cvt_pk_bf16_f32 v{32+i}, v{DC+2*i}, v{DC+2*i+1}")
        for i in range(5): a(f"v_cvt_pk_bf16_f32 v{40+i}, v{DC+10-2*i}, v{DC+9-2*i}")
        a(f"buffer_store_dwordx4 v[32:35], v5, {sr(sOUT)}, s{sT2} offen")
        a(f"buffer_store_dword v36, v5, {sr(sOUT)}, s{sT2} offen offset:16")
        a(f"buffer_store_dwordx4 v[40:43], v6, {sr(sOUT)}, s{sT3} offen")
        a(f"buffer_store_dword v44, v6, {sr(sOUT)}, s{sT3} offen offset:16")
        a(f"{N}:")

    def build(self):
        a = self.a
        self.prologue()
        a(f"s_cmp_ge_u32 s{sJ}, 16")
        a("s_cbranch_scc1 L_QB")
        a(f"s_cmp_ge_u32 s{sWAVE}, 4")
        a("s_cbranch_scc0 L_KV_CP")
        self.loader(True, "KV")
        a("s_branch L_PHI")
        a("L_KV_CP:")
        self.compute(True, "KV")
        a("s_branch L_PHI")
        a("L_QB:")
        a(f"s_cmp_ge_u32 s2, {128+NB1}")
        a("s_cbranch_scc1 L_ZERO")
        self.b1()
        a(f"s_movk_i32 s{sSIG}, 128")
        a("s_branch L_Q")
        a("L_ZERO:")
        a(f"s_mov_b32 s{sSIG}, 0")
        a(f"s_cmp_ge_u32 s{sWAVE}, 4")
        a("s_cbranch_scc1 L_Q")
        for r in range(4, 8): a(f"v_mov_b32 v{r}, 0")
        a("v_lshlrev_b32 v2, 4, v0")
        a(f"s_sub_u32 s{sA}, s2, {128+NB1}")
        a(f"s_lshl_b32 s{sA}, s{sA}, 12")
        a(f"buffer_store_dwordx4 v[4:7], v2, {sr(sWS)}, s{sA} offen sc1")
        a("L_Q:")
        self.st(3)
        a(f"s_cmp_ge_u32 s{sWAVE}, 4")
        a("s_cbranch_scc0 L_Q_CP")
        self.loader(False, "Q")
        a("s_branch L_PHI")
        a("L_Q_CP:")
        self.compute(False, "Q")
        a("L_PHI:")
        self.phi()
        if self.stamps: self.st(3 if False else 10)
        a(f"s_cmp_ge_u32 s{sJ}, 16")
        a("s_cbranch_scc1 L_QB2")
        self.kvpart()
        self.wo_dma()
        a(f"s_lshl_b32 s{sA}, s{sXCD}, 3")
        a(f"s_lshr_b32 s{sB}, s{sJL}, 1")
        a(f"s_add_u32 s{sA}, s{sA}, s{sB}")
        a(f"s_and_b32 s{sB}, s{sJL}, 1")
        a(f"s_lshl_b32 s{sB}, s{sB}, 3")
        a(f"s_mov_b32 s{sC}, 0")
        a(f"s_mov_b32 s{sD}, 1.0")
        a(f"s_mov_b32 s{sE}, 1.0")
        a(f"s_mov_b32 s{sF}, {f32(0.25)}")
        a(f"s_mov_b32 s{sT0}, s{sA}")
        a(f"s_mov_b32 s{sT1}, 8")
        a(f"s_cmp_lg_u32 s{sA}, 0")
        a("s_cbranch_scc1 L_B2")
        a(f"s_mov_b32 s{sE}, 0")
        a(f"s_cmp_eq_u32 s{sB}, 0")
        a("s_cbranch_scc1 L_B2")
        a(f"s_mov_b32 s{sB}, 0")
        a(f"s_mov_b32 s{sC}, 64")
        a(f"s_mov_b32 s{sD}, 0")
        a(f"s_mov_b32 s{sE}, 1.0")
        a(f"s_mov_b32 s{sF}, 0")
        a(f"s_mov_b32 s{sT0}, 64")
        a("s_branch L_B2")
        a("L_QB2:")
        self.wo_dma()
        a("s_cmp_lg_u32 s2, 255")
        a("s_cbranch_scc1 L_OSTEP")
        a(f"s_mov_b32 s{sA}, 0")
        a(f"s_mov_b32 s{sB}, 8")
        a(f"s_mov_b32 s{sC}, 0")
        a(f"s_mov_b32 s{sD}, 1.0")
        a(f"s_mov_b32 s{sE}, 0")
        a(f"s_mov_b32 s{sF}, {f32(0.25)}")
        a(f"s_mov_b32 s{sT0}, 0")
        a(f"s_mov_b32 s{sT1}, 1")
        a("L_B2:")
        self.b2()
        self.st(7)
        a(f"s_cmp_lt_u32 s{sJ}, 16")
        a("s_cbranch_scc1 L_FINAL")
        a("s_barrier")
        a("L_OSTEP:")
        self.st(4)
        self.ostep()
        a("L_FINAL:")
        self.final()
        if self.stamps:
            self.st(11)
            a("s_waitcnt lgkmcnt(0)")
            a(f"s_lshl_b32 s{sA}, s2, 3")
            a(f"s_add_u32 s{sA}, s{sA}, s{sWAVE}")
            a(f"s_lshl_b32 s{sA}, s{sA}, 7")
            a(f"s_add_u32 s{sA}, s{sA}, {STAMPS}")
            a("v_mov_b32 v2, 0")
            a("s_mov_b64 exec, 1")
            for i in range(12):
                a(f"v_mov_b32 v4, s{ST0+2*i}")
                a(f"v_mov_b32 v5, s{ST0+2*i+1}")
                a(f"buffer_store_dwordx2 v[4:5], v2, {sr(sWS)}, s{sA} offen offset:{8*i}")
        a("L_END:")
        a("s_endpgm")
        K = NAME + "_kernel"
        head = open("header.txt").read() if True else ""
        txt = head + f"; @launch grid=(256,1,1) block=(512,1,1) lds={LDS_BYTES}\n.amdgcn_target \"amdgcn-amd-amdhsa--gfx950\"\n"
        txt += kernel_head(K) + a.text() + kernel_desc(K, 256, 102, 256)
        return txt

if __name__ == "__main__":
    out = sys.argv[1]
    g = Gen(stamps="--stamps" in sys.argv, rot="--norot" not in sys.argv)
    txt = g.build()
    open(out, "w").write(txt)
    bad = hazard.check(txt)
    print("lines", txt.count("\n"), "hazards", len(bad))
```

```python
import sys, math, struct
from asmlib import Asm, NAME, kernel_head, kernel_desc
import hazard

ACC = 0
KVC = 0x20000
OC = 0x20800
OB = 0x40000
UB = 0x300000
STAMPS = 0x600000
DUMP = 0x800000
WS_BYTES = 0x1000000
LDS_BYTES = 163840
WPHI = 147456
KVIMG = 155136
KVZERO = KVIMG + 6720
HAND = 0
VIMG = 12288; VS = 168
PHIMG = 73728; PS = 336
WOIMG = 16384
ZIMG = 118784; ZS = 1288
VB = 139392; VBS = 144; VBW = 21 * 144
RED = 118784
NINIT = 48; NB1 = 80
SPIN = 1 << 22

sX, sW, sPHI, sWO, sBX, sOUT, sDBG, sWS = 8, 12, 16, 20, 24, 28, 32, 36
sWAVE, sRB, sG, sJL, sXCD, sJ, sROT, sCW = 40, 41, 42, 43, 44, 45, 46, 47
sIT, sSLOT, sXK, sWK, sKI, sXROW, sWROW, sSIG = 48, 49, 50, 51, 52, 53, 54, 55
sT0, sT1, sT2, sT3, sT4, sT5 = 56, 57, 58, 59, 60, 61
sP, sSPIN = 62, 63
sEX = 64
sA, sB, sC, sD, sE, sF = 66, 67, 68, 69, 70, 71
ST0 = 72

def f32(x): return "0x%08x" % struct.unpack("<I", struct.pack("<f", x))[0]
def vr(b, n=1): return f"v{b}" if n == 1 else f"v[{b}:{b+n-1}]"
def sr(b, n=4): return f"s[{b}:{b+n-1}]"

class Gen:
    def __init__(self, stamps=False, dump=None, rot=True, dbgspan=None):
        self.a = Asm(); self.stamps = stamps; self.dump = dump; self.rot = rot; self.dbgspan = dbgspan
    def st(self, i):
        if self.stamps: self.a(f"s_memrealtime s[{ST0+2*i}:{ST0+2*i+1}]")
    def align8(self):
        self.a(".p2align 3")

    def poll(self, srd, soff, target, name):
        a = self.a
        L = a.label("POLL"); D = a.label("POLLD")
        a("v_mov_b32 v2, 0")
        a(f"s_mov_b32 s{sSPIN}, {SPIN}")
        a(f"{L}:")
        a(f"buffer_load_dword v3, v2, {sr(srd)}, {soff} offen sc1")
        a("s_waitcnt vmcnt(0)")
        a(f"v_readfirstlane_b32 s{sT5}, v3")
        a(f"s_sub_u32 s{sSPIN}, s{sSPIN}, 1")
        a(f"s_cbranch_scc1 {D}")
        a(f"s_cmp_lt_u32 s{sT5}, {target}")
        a(f"s_cbranch_scc1 {L}")
        a(f"{D}:")
    def signal(self, srd, soff):
        a = self.a
        a("v_mov_b32 v2, 0")
        a("v_mov_b32 v3, 1")
        a(f"s_mov_b64 s[{sEX}:{sEX+1}], exec")
        a("s_mov_b64 exec, 1")
        a(f"buffer_atomic_add v3, v2, {sr(srd)}, {soff} offen")
        a(f"s_mov_b64 exec, s[{sEX}:{sEX+1}]")
    def trlane(self, blk, r, cq, h):
        a = self.a
        a(f"v_bfe_u32 v{blk}, v1, 4, 1")
        a(f"v_bfe_u32 v{r}, v1, 2, 2")
        a(f"v_and_b32 v{cq}, 3, v1")
        a(f"v_lshrrev_b32 v{h}, 5, v1")

    def prologue(self):
        a = self.a
        a("s_cmp_ge_u32 s2, 256")
        a("s_cbranch_scc1 L_END")
        a(f"s_load_dwordx2 s[{sX}:{sX+1}], s[0:1], 0")
        a(f"s_load_dwordx2 s[{sW}:{sW+1}], s[0:1], 8")
        a(f"s_load_dwordx2 s[{sBX}:{sBX+1}], s[0:1], 32")
        a(f"s_load_dwordx2 s[{sWS}:{sWS+1}], s[0:1], 88")
        a("s_load_dwordx4 s[4:7], s[0:1], 16")
        a("s_load_dwordx4 s[56:59], s[0:1], 72")
        self.st(0)
        if self.stamps:
            for i in range(1, 12): a(f"s_mov_b64 s[{ST0+2*i}:{ST0+2*i+1}], 0")
        a("v_lshrrev_b32 v2, 6, v0")
        a("v_and_b32 v1, 63, v0")
        a(f"v_readfirstlane_b32 s{sWAVE}, v2")
        a(f"s_and_b32 s{sXCD}, s2, 7")
        a(f"s_lshr_b32 s{sJ}, s2, 3")
        a(f"s_and_b32 s{sJL}, s{sJ}, 15")
        a(f"s_and_b32 s{sRB}, s{sJL}, 3")
        a(f"s_lshr_b32 s{sG}, s{sJL}, 2")
        if self.rot:
            a(f"s_add_u32 s{sROT}, s{sRB}, s{sG}")
            a(f"s_and_b32 s{sROT}, s{sROT}, 3")
            a(f"s_mul_i32 s{sROT}, s{sROT}, 5")
            a(f"s_add_u32 s{sROT}, s{sROT}, 1")
            a(f"s_lshr_b32 s{sROT}, s{sROT}, 1")
        else:
            a(f"s_mov_b32 s{sROT}, 0")
        a(f"s_and_b32 s{sA}, s{sXCD}, 3")
        a(f"s_lshl2_add_u32 s{sRB}, s{sA}, s{sRB}")
        a(f"s_lshr_b32 s{sA}, s{sXCD}, 2")
        a(f"s_lshl2_add_u32 s{sG}, s{sA}, s{sG}")
        a(f"s_and_b32 s{sCW}, s{sWAVE}, 3")
        a(f"s_lshr_b32 s{sP}, s{sWAVE}, 2")
        for s, nb in ((sX, 2048*1280), (sW, 640*3840), (sPHI, 32*800), (sWO, 640*1280), (sBX, 2048*1280),
                      (sOUT, 2048*2560), (sDBG, 256), (sWS, WS_BYTES)):
            a(f"s_mov_b32 s{s+2}, {nb}")
            a(f"s_mov_b32 s{s+3}, 0x20000")
        a("s_waitcnt lgkmcnt(0)")
        a(f"s_mov_b64 s[{sPHI}:{sPHI+1}], s[4:5]")
        a(f"s_mov_b64 s[{sWO}:{sWO+1}], s[6:7]")
        a(f"s_mov_b64 s[{sOUT}:{sOUT+1}], s[56:57]")
        a(f"s_mov_b64 s[{sDBG}:{sDBG+1}], s[58:59]")

    def loader(self, kv, tag):
        a = self.a
        NP = 5 if kv else 3
        CPR = 20 if kv else 12
        SLOT = 16384 + NP * 4096
        per = 4 + NP
        vX, vW = 4, 8
        a("v_lshrrev_b32 v2, 3, v1")
        a("v_and_b32 v3, 7, v1")
        a("v_lshrrev_b32 v13, 4, v1")
        a("v_xor_b32 v3, v3, v13")
        a("v_mul_u32_u24 v2, 1280, v2")
        a(f"v_lshl_add_u32 v{vX}, v3, 4, v2")
        a(f"v_xor_b32 v3, 64, v{vX}")
        a(f"v_add_u32 v{vX+1}, {10240-1024}, v3")
        a(f"v_add_u32 v{vX+2}, {2*(10240-1024)}, v{vX}")
        a(f"v_add_u32 v{vX+3}, {3*(10240-1024)}, v3")
        a(f"s_lshl_b32 s{sA}, s{sRB}, 2")
        a(f"s_add_u32 s{sA}, s{sA}, s{sCW}")
        a(f"s_mul_i32 s{sXROW}, s{sA}, {32*1280}")
        a(f"s_lshl_b32 s{sXK}, s{sROT}, 7")
        a(f"s_add_u32 s{sXK}, s{sXK}, s{sXROW}")
        a(f"s_lshl_b32 s{sSLOT}, s{sCW}, 12")
        a(f"s_mul_i32 s{sB}, s{sCW}, {NP*1024 - 4096}")
        a(f"s_add_u32 s{sB}, s{sB}, 16384")
        a(f"s_mul_i32 s{sWROW}, s{sCW}, {16*3840}")
        a(f"s_mul_i32 s{sA}, s{sG}, 160")
        a(f"s_add_u32 s{sWROW}, s{sWROW}, s{sA}")
        if kv: a(f"s_add_u32 s{sWROW}, s{sWROW}, 1280")
        a(f"s_mul_i32 s{sWK}, s{sROT}, {64*3840}")
        a(f"s_add_u32 s{sWK}, s{sWK}, s{sWROW}")
        a(f"s_mov_b32 s{sKI}, s{sROT}")
        def issue_x():
            a(f"s_mov_b32 m0, s{sSLOT}")
            a("s_nop 0")
            for i in range(4):
                a(f"buffer_load_dwordx4 v{vX+i}, {sr(sX)}, s{sXK} offen offset:{1024*i} lds")
        def issue_w():
            a(f"s_add_u32 m0, s{sSLOT}, s{sB}")
            a("s_nop 0")
            for i in range(min(NP, 4)):
                a(f"buffer_load_dwordx4 v{vW+i}, {sr(sW)}, s{sWK} offen offset:{1024*i} lds")
            if NP == 5:
                a("s_add_u32 m0, m0, 4096")
                a("s_nop 0")
                a(f"buffer_load_dwordx4 v{vW+4}, {sr(sW)}, s{sWK} offen lds")
        def advance():
            a(f"s_add_u32 s{sKI}, s{sKI}, 1")
            a(f"s_add_u32 s{sXK}, s{sXK}, 128")
            a(f"s_add_u32 s{sWK}, s{sWK}, {64*3840}")
            a(f"s_cmp_eq_u32 s{sKI}, 10")
            a(f"s_cselect_b32 s{sKI}, 0, s{sKI}")
            a(f"s_cselect_b32 s{sXK}, s{sXROW}, s{sXK}")
            a(f"s_cselect_b32 s{sWK}, s{sWROW}, s{sWK}")
            a(f"s_add_u32 s{sSLOT}, s{sSLOT}, {SLOT}")
            a(f"s_cmp_ge_u32 s{sSLOT}, {4*SLOT}")
            a(f"s_cselect_b32 s{sA}, {4*SLOT}, 0")
            a(f"s_sub_u32 s{sSLOT}, s{sSLOT}, s{sA}")
        issue_x()
        mul = (65536 + CPR - 1) // CPR
        for q in range(64 * NP): assert (q * mul) >> 16 == q // CPR
        for i in range(NP):
            comp = 1024 * i if i < 4 else 0
            a(f"v_add_u32 v2, {64*i}, v1")
            a(f"v_mul_u32_u24 v3, {mul}, v2")
            a("v_lshrrev_b32 v3, 16, v3")
            a(f"v_mul_u32_u24 v13, {CPR}, v3")
            a("v_sub_u32 v2, v2, v13")
            a("v_mul_u32_u24 v3, 3840, v3")
            a("v_cmp_lt_u32 vcc, 9, v2")
            a("v_lshl_add_u32 v3, v2, 4, v3")
            a(f"v_mov_b32 v13, {1120 if kv else 0x40000000}")
            a("v_cndmask_b32 v13, 0, v13, vcc")
            if comp: a(f"v_subrev_u32 v3, {comp}, v3")
            a(f"v_add_u32 v{vW+i}, v3, v13")
        issue_w(); advance()
        self.st(1)
        issue_x(); issue_w(); advance()
        issue_x(); issue_w(); advance()
        a(f"s_mov_b32 s{sIT}, 0")
        L = f"L_LD_{tag}"
        self.align8()
        a(f"{L}:")
        a(f"s_waitcnt vmcnt({2*per})")
        a("s_barrier")
        if not kv:
            S = a.label("NOSIG")
            a(f"s_cmp_eq_u32 s{sIT}, 1")
            a(f"s_cbranch_scc0 {S}")
            a(f"s_cmp_eq_u32 s{sWAVE}, 4")
            a(f"s_cbranch_scc0 {S}")
            self.signal(sDBG, f"s{sSIG}")
            a(f"{S}:")
        issue_x(); issue_w(); advance()
        a(f"s_add_u32 s{sIT}, s{sIT}, 1")
        a(f"s_cmp_lt_u32 s{sIT}, 7")
        a(f"s_cbranch_scc1 {L}")
        a("v_mov_b32 v2, 0")
        a(f"buffer_load_dword v14, v2, {sr(sDBG)}, 0 offen sc1")
        a(f"s_waitcnt vmcnt({2*per})")
        a("s_barrier")
        a(f"s_waitcnt vmcnt({per})")
        a("s_barrier")
        a("s_waitcnt vmcnt(0)")
        a("s_barrier")
        OK = a.label("INITOK")
        a(f"v_readfirstlane_b32 s{sT5}, v14")
        a("s_nop 0")
        a(f"s_cmp_ge_u32 s{sT5}, {NINIT}")
        a(f"s_cbranch_scc1 {OK}")
        self.poll(sDBG, 0, NINIT, "init")
        a(f"{OK}:")

    def wphi_issue(self):
        a = self.a
        a(f"s_lshl_b32 s{sA}, s{sG}, 2")
        a(f"s_add_u32 s{sA}, s{sA}, s{sCW}")
        a(f"s_mul_i32 s{sA}, s{sA}, 800")
        a("v_lshlrev_b32 v2, 3, v1")
        a("v_add_u32 v3, 512, v2")
        a("v_cmp_gt_u32 vcc, 36, v1")
        a("v_mov_b32 v9, 0x40000000")
        a(f"buffer_load_dwordx2 v[100:101], v2, {sr(sPHI)}, s{sA} offen")
        a("v_cndmask_b32 v3, v9, v3, vcc")
        a(f"buffer_load_dwordx2 v[104:105], v3, {sr(sPHI)}, s{sA} offen")
    def wphi_write(self):
        a = self.a
        a(f"s_mul_i32 s{sA}, s{sCW}, 1600")
        a(f"s_lshr_b32 s{sB}, s{sCW}, 1")
        a(f"s_mul_i32 s{sB}, s{sB}, 1280")
        a(f"s_add_u32 s{sA}, s{sA}, s{sB}")
        a(f"s_add_u32 s{sA}, s{sA}, {WPHI}")
        a(f"v_lshl_add_u32 v2, v1, 4, s{sA}")
        a(f"s_and_b32 s{sB}, s{sCW}, 1")
        a(f"s_cmp_eq_u32 s{sB}, 0")
        a(f"s_cselect_b32 s{sB}, -1, 0")
        a(f"s_not_b32 s{sC}, s{sB}")
        a("s_waitcnt vmcnt(0)")
        for b in (100, 104):
            a(f"v_and_b32 v{b+2}, s{sC}, v{b}")
            a(f"v_and_b32 v{b+3}, s{sC}, v{b+1}")
            a(f"v_and_b32 v{b}, s{sB}, v{b}")
            a(f"v_and_b32 v{b+1}, s{sB}, v{b+1}")
        a("ds_write_b128 v2, v[100:103]")
        a("v_cmp_gt_u32 vcc, 36, v1")
        a(f"s_and_saveexec_b64 s[{sEX}:{sEX+1}], vcc")
        a("ds_write_b128 v2, v[104:107] offset:1024")
        a("s_mov_b64 exec, 0xfffff")
        a(f"s_mul_i32 s{sA}, s{sCW}, 320")
        a(f"s_add_u32 s{sA}, s{sA}, {WPHI+3200}")
        a(f"v_lshl_add_u32 v2, v1, 4, s{sA}")
        for r in range(108, 112): a(f"v_mov_b32 v{r}, 0")
        a("ds_write_b128 v2, v[108:111]")
        a(f"s_mov_b64 exec, s[{sEX}:{sEX+1}]")

    def compute(self, kv, tag):
        a = self.a
        NT = 5 if kv else 3
        RSW = 320 if kv else 192
        SLOT = 16384 + (5 if kv else 3) * 4096
        ACCR = 16
        FX = [96, 120]; FA = [100, 124]
        vXA, vWA = 4, 8
        self.wphi_issue()
        a("v_and_b32 v2, 31, v1")
        a("v_bfe_u32 v3, v1, 1, 3")
        a("v_lshrrev_b32 v9, 5, v1")
        a("v_xor_b32 v3, v3, v9")
        a(f"s_lshl_b32 s{sA}, s{sCW}, 12")
        a("v_lshlrev_b32 v2, 7, v2")
        a("v_lshl_add_u32 v2, v3, 4, v2")
        a(f"v_add_u32 v{vXA}, s{sA}, v2")
        for k in range(1, 4): a(f"v_xor_b32 v{vXA+k}, {32*k}, v{vXA}")
        self.trlane(10, 11, 12, 9)
        a("v_lshl_add_u32 v11, v9, 3, v11")
        a(f"v_mul_u32_u24 v11, {RSW}, v11")
        a("v_lshl_add_u32 v11, v10, 5, v11")
        a("v_lshl_add_u32 v11, v12, 3, v11")
        a(f"v_add_u32 v{vWA}, 16384, v11")
        for r in range(ACCR, ACCR + 16 * NT): a(f"v_mov_b32 v{r}, 0")
        self.wphi_write()
        for r in range(FX[1], FX[1] + 4 + 4 * NT): a(f"v_mov_b32 v{r}, 0")
        a(f"s_mov_b32 s{sIT}, 0")
        a(f"s_mov_b32 s{sSLOT}, 0")
        a("s_waitcnt lgkmcnt(0)")
        def reads(buf, ks):
            out = [f"ds_read_b128 {vr(FX[buf],4)}, v{vXA+ks}"]
            for t in range(NT):
                for j in range(2):
                    out.append(f"ds_read_b64_tr_b16 {vr(FA[buf]+4*t+2*j,2)}, v{vWA} offset:{(16*ks+4*j)*RSW+64*t}")
            return out
        def step(mb, rb, ks, waited):
            rd = reads(rb, ks) if rb is not None else []
            plan = [3, 3, 3, 2, 0] if NT == 5 else [3, 2, 2]
            older = 1 + 2 * NT; new = 0; pos = 0
            for t in range(NT):
                if not waited:
                    left = older - (1 + 2 * (t + 1))
                    a(f"s_waitcnt lgkmcnt({left + new})")
                a(f"v_mfma_f32_32x32x16_bf16 {vr(ACCR+16*t,16)}, {vr(FA[mb]+4*t,4)}, {vr(FX[mb],4)}, {vr(ACCR+16*t,16)}")
                for k in range(plan[t]):
                    if pos < len(rd): a(rd[pos]); pos += 1; new += 1
        L = f"L_CP_{tag}"
        self.align8()
        a(f"{L}:")
        a("s_barrier")
        if self.stamps:
            S = a.label("NOST")
            a(f"s_cmp_eq_u32 s{sIT}, 0")
            a(f"s_cbranch_scc0 {S}")
            self.st(1)
            a(f"{S}:")
            self.align8()
        step(1, 0, 0, True)
        step(0, 1, 1, False)
        step(1, 0, 2, False)
        step(0, 1, 3, False)
        a(f"s_add_u32 s{sSLOT}, s{sSLOT}, 1")
        a(f"s_and_b32 s{sSLOT}, s{sSLOT}, 3")
        a(f"s_cmp_eq_u32 s{sSLOT}, 0")
        a(f"s_cselect_b32 s{sA}, {(-3*SLOT) & 0xffffffff}, {0}")
        a(f"s_cselect_b32 s{sB}, 0, {SLOT}")
        a(f"s_add_u32 s{sA}, s{sA}, s{sB}")
        for k in range(5): a(f"v_add_u32 v{vXA+k}, s{sA}, v{vXA+k}")
        a(f"s_add_u32 s{sIT}, s{sIT}, 1")
        a(f"s_cmp_lt_u32 s{sIT}, 10")
        if kv: a("s_waitcnt lgkmcnt(0)")
        else: a("s_waitcnt vmcnt(0) lgkmcnt(0)")
        a(f"s_cbranch_scc1 {L}")
        step(1, None, 0, True)
        self.st(2)
        a("s_nop 7")
        a("s_nop 1")
        KB = 144
        for s in range(5):
            if s == 4: a("s_nop 7")
            base = ACCR + 16 * (s >> 1) + 8 * (s & 1)
            for q in range(4):
                a(f"v_cvt_pk_bf16_f32 v{KB+4*s+q}, v{base+2*q}, v{base+2*q+1}")
        a(f"s_mul_i32 s{sA}, s{sCW}, 3072")
        a(f"v_lshl_add_u32 v2, v1, 4, s{sA}")
        for s in range(3):
            a(f"ds_write_b128 v2, {vr(KB+8+4*s,4)} offset:{HAND+1024*s}")
        if kv:
            a("v_and_b32 v2, 31, v1")
            a(f"s_lshl_b32 s{sA}, s{sCW}, 5")
            a(f"v_add_u32 v2, s{sA}, v2")
            a(f"v_mul_u32_u24 v2, {VS}, v2")
            a("v_lshrrev_b32 v3, 5, v1")
            a("v_lshl_add_u32 v3, v3, 3, v2")
            a("s_nop 3")
            for vq in range(10):
                base = ACCR + 32 + 8 + 4 * vq
                t = 164 + 2 * vq
                a(f"v_cvt_pk_bf16_f32 v{t}, v{base}, v{base+1}")
                a(f"v_cvt_pk_bf16_f32 v{t+1}, v{base+2}, v{base+3}")
                a(f"ds_write_b64 v3, {vr(t,2)} offset:{VIMG+16*vq}")
            a("v_mov_b32 v184, 0x3f80")
            a("v_mov_b32 v185, 0")
            a(f"ds_write_b64 v2, v[184:185] offset:{VIMG+160}")
        a("s_waitcnt lgkmcnt(0)")

    def phi(self):
        a = self.a
        KB = 144
        A1, A2, P1, P2 = 116, 128, 164, 180
        a("s_barrier")
        H = a.label("NOHAND")
        a(f"s_cmp_eq_u32 s{sP}, 0")
        a(f"s_cbranch_scc1 {H}")
        a(f"s_mul_i32 s{sA}, s{sCW}, 3072")
        a(f"v_lshl_add_u32 v2, v1, 4, s{sA}")
        for s in range(3):
            a(f"ds_read_b128 {vr(KB+4*s,4)}, v2 offset:{HAND+1024*s}")
        a(f"{H}:")
        self.trlane(10, 11, 12, 9)
        a("v_lshl_add_u32 v11, v9, 2, v11")
        a("v_mul_u32_u24 v11, 80, v11")
        a("v_lshl_add_u32 v11, v10, 5, v11")
        a("v_lshl_add_u32 v11, v12, 3, v11")
        a(f"s_mul_i32 s{sA}, s{sP}, 3840")
        a(f"s_add_u32 s{sA}, s{sA}, {WPHI}")
        a(f"v_add_u32 v11, s{sA}, v11")
        for s in range(3):
            for j in range(2):
                a(f"ds_read_b64_tr_b16 {vr(A1+4*s+2*j,2)}, v11 offset:{(16*s+8*j)*80}")
        for s in range(3):
            for j in range(2):
                a(f"ds_read_b64_tr_b16 {vr(A2+4*s+2*j,2)}, v11 offset:{(16*s+8*j)*80+64}")
        a("s_waitcnt lgkmcnt(6)")
        for s in range(3):
            a(f"v_mfma_f32_32x32x16_bf16 {vr(P1,16)}, {vr(A1+4*s,4)}, {vr(KB+4*s,4)}, {'0' if s == 0 else vr(P1,16)}")
        a("s_waitcnt lgkmcnt(0)")
        for s in range(3):
            a(f"v_mfma_f32_32x32x16_bf16 {vr(P2,16)}, {vr(A2+4*s,4)}, {vr(KB+4*s,4)}, {'0' if s == 0 else vr(P2,16)}")
        a("s_nop 7")
        a("s_nop 0")
        p = [P1 + i for i in range(20)]
        assert P2 == P1 + 16
        MX, MN = 236, 237
        a(f"v_max3_f32 v{MX}, v{p[0]}, v{p[1]}, v{p[2]}")
        a(f"v_min3_f32 v{MN}, v{p[0]}, v{p[1]}, v{p[2]}")
        for i in range(3, 15, 2):
            a(f"v_max3_f32 v{MX}, v{MX}, v{p[i]}, v{p[i+1]}")
            a(f"v_min3_f32 v{MN}, v{MN}, v{p[i]}, v{p[i+1]}")
        for i in (15, 17):
            a(f"v_max3_f32 v{MX}, v{MX}, v{p[i]}, v{p[i+1]}")
            a(f"v_min3_f32 v{MN}, v{MN}, v{p[i]}, v{p[i+1]}")
        a(f"v_max_f32 v{MX}, v{MX}, v{p[19]}")
        a(f"v_min_f32 v{MN}, v{MN}, v{p[19]}")
        a(f"s_mov_b32 s{sA}, {f32(math.log2(math.e))}")
        a(f"v_mul_f32 v{MX}, s{sA}, v{MX}")
        a(f"v_mul_f32 v{MN}, s{sA}, v{MN}")
        EP, EM = 96, 196
        for i in range(20):
            a(f"v_fma_f32 v{EP+i}, v{p[i]}, s{sA}, -v{MX}")
            a(f"v_fma_f32 v{EM+i}, -v{p[i]}, s{sA}, v{MN}")
        for i in range(20):
            a(f"v_exp_f32 v{EP+i}, v{EP+i}")
            a(f"v_exp_f32 v{EM+i}, v{EM+i}")
        S0, S1, S2, S3 = 238, 239, 240, 241
        a(f"v_add_f32 v{S0}, v{EP}, v{EP+1}")
        a(f"v_add_f32 v{S1}, v{EM}, v{EM+1}")
        a(f"v_add_f32 v{S2}, v{EP+2}, v{EP+3}")
        a(f"v_add_f32 v{S3}, v{EM+2}, v{EM+3}")
        for i in range(4, 20, 2):
            a(f"v_add_f32 v{S0}, v{S0}, v{EP+i}")
            a(f"v_add_f32 v{S1}, v{S1}, v{EM+i}")
            a(f"v_add_f32 v{S2}, v{S2}, v{EP+i+1}")
            a(f"v_add_f32 v{S3}, v{S3}, v{EM+i+1}")
        a(f"v_add_f32 v{S0}, v{S0}, v{S2}")
        a(f"v_add_f32 v{S1}, v{S1}, v{S3}")
        a(f"v_rcp_f32 v{S0}, v{S0}")
        a(f"v_rcp_f32 v{S1}, v{S1}")
        a("s_nop 0")
        PF = 216
        for i in range(0, 20, 2):
            a(f"v_mul_f32 v{EP+i}, v{S0}, v{EP+i}")
            a(f"v_mul_f32 v{EP+i+1}, v{S0}, v{EP+i+1}")
            a(f"v_mul_f32 v{EM+i}, v{S1}, v{EM+i}")
            a(f"v_mul_f32 v{EM+i+1}, v{S1}, v{EM+i+1}")
            a(f"v_cvt_pk_bf16_f32 v{PF+i//2}, v{EP+i}, v{EP+i+1}")
            a(f"v_cvt_pk_bf16_f32 v{PF+10+i//2}, v{EM+i}, v{EM+i+1}")

    def kvpart(self):
        a = self.a
        PF = 216
        a("v_and_b32 v2, 31, v1")
        a(f"s_lshl_b32 s{sA}, s{sCW}, 5")
        a(f"v_add_u32 v2, s{sA}, v2")
        a(f"v_mul_u32_u24 v2, {PS}, v2")
        a("v_lshrrev_b32 v3, 5, v1")
        a("v_mul_u32_u24 v3, 80, v3")
        a(f"s_mul_i32 s{sA}, s{sP}, 160")
        a(f"s_add_u32 s{sA}, s{sA}, {PHIMG}")
        a(f"v_add3_u32 v2, v2, v3, s{sA}")
        for c in range(5):
            a(f"ds_write_b128 v2, {vr(PF+4*c,4)} offset:{16*c}")
        self.trlane(10, 11, 12, 9)
        a("v_lshl_add_u32 v11, v9, 3, v11")
        a("v_lshl_add_u32 v13, v10, 2, v12")
        a(f"s_mul_i32 s{sA}, s{sCW}, 40")
        a(f"v_lshl_add_u32 v14, v13, 3, s{sA}")
        a("v_mov_b32 v15, 160")
        a("v_cmp_gt_u32 vcc, 5, v13")
        a(f"v_mul_u32_u24 v4, {VS}, v11")
        a(f"v_mul_u32_u24 v5, {PS}, v11")
        a("v_cndmask_b32 v14, v15, v14, vcc")
        a("v_add_u32 v4, v4, v14")
        a(f"s_mul_i32 s{sA}, s{sCW}, 80")
        a(f"s_lshl_b32 s{sB}, s{sP}, 6")
        a(f"s_add_u32 s{sA}, s{sA}, s{sB}")
        a(f"s_add_u32 s{sA}, s{sA}, {PHIMG}")
        a(f"v_lshl_add_u32 v5, v13, 3, v5")
        a(f"v_add_u32 v5, s{sA}, v5")
        a("v_and_b32 v2, 31, v1")
        a("v_lshlrev_b32 v6, 2, v2")
        a("v_mul_u32_u24 v3, 768, v9")
        a("v_add_u32 v6, v6, v3")
        a(f"s_cmp_eq_u32 s{sP}, 0")
        a(f"s_cselect_b32 s{sA}, 32, 8")
        a("v_mov_b32 v15, 0x40000000")
        a(f"v_cmp_gt_u32 vcc, s{sA}, v2")
        a(f"s_lshl_b32 s{sB}, s{sG}, 2")
        a(f"s_add_u32 s{sB}, s{sB}, s{sCW}")
        a("v_cndmask_b32 v6, v15, v6, vcc")
        a("v_cmp_gt_u32 vcc, 32, v1")
        a(f"s_mul_i32 s{sB}, s{sB}, 4032")
        a(f"s_lshl_b32 s{sA}, s{sP}, 7")
        a("v_cndmask_b32 v7, v15, v6, vcc")
        a(f"s_add_u32 s{sB}, s{sB}, s{sA}")
        if ACC: a(f"s_add_u32 s{sB}, s{sB}, {ACC}")
        a("s_waitcnt lgkmcnt(0)")
        a("s_barrier")
        FA, FB, D = 16, 48, 80
        def rd(ks):
            for j in range(2):
                a(f"ds_read_b64_tr_b16 {vr(FA+4*ks+2*j,2)}, v4 offset:{VIMG+(16*ks+4*j)*VS}")
            for j in range(2):
                a(f"ds_read_b64_tr_b16 {vr(FB+4*ks+2*j,2)}, v5 offset:{(16*ks+4*j)*PS}")
        for ks in range(3): rd(ks)
        for ks in range(8):
            left = min(2, 7 - ks) * 4
            a(f"s_waitcnt lgkmcnt({left})")
            a(f"v_mfma_f32_32x32x16_bf16 {vr(D,16)}, {vr(FA+4*ks,4)}, {vr(FB+4*ks,4)}, {'0' if ks == 0 else vr(D,16)}")
            if ks + 3 < 8: rd(ks + 3)
        a("s_nop 7")
        a("s_nop 3")
        for j in range(3):
            for i in range(4):
                v = 6 if (j < 2 or i == 0) else 7
                a(f"buffer_atomic_add_f32 v{D+4*j+i}, v{v}, {sr(sWS)}, s{sB} offen offset:{(8*j+i)*192}")
        self.st(4)
        a("s_waitcnt vmcnt(0)")
        a("s_barrier")
        self.st(5)
        S = a.label("NOKVSIG")
        a(f"s_cmp_eq_u32 s{sWAVE}, 0")
        a(f"s_cbranch_scc0 {S}")
        a(f"s_lshl_b32 s{sA}, s{sG}, 8")
        a(f"s_add_u32 s{sA}, s{sA}, {KVC}")
        self.signal(sWS, f"s{sA}")
        a(f"{S}:")

    def wo_dma(self):
        a = self.a
        V = 244
        mul = (65536 + 9) // 10
        for q in range(320): assert (q * mul) >> 16 == q // 10
        for i in range(5):
            comp = 1024 * i if i < 4 else 0
            a(f"v_add_u32 v2, {64*i}, v1")
            a(f"v_mul_u32_u24 v3, {mul}, v2")
            a("v_lshrrev_b32 v3, 16, v3")
            a("v_mul_u32_u24 v13, 10, v3")
            a("v_sub_u32 v2, v2, v13")
            a("v_mul_u32_u24 v3, 1280, v3")
            a(f"v_lshl_add_u32 v{V+i}, v2, 4, v3")
            if comp: a(f"v_subrev_u32 v{V+i}, {comp}, v{V+i}")
        a(f"s_lshr_b32 s{sA}, s{sJ}, 2")
        a(f"s_mul_i32 s{sA}, s{sA}, 160")
        a(f"s_mul_i32 s{sB}, s{sWAVE}, {32*1280}")
        a(f"s_add_u32 s{sA}, s{sA}, s{sB}")
        a(f"s_mul_i32 s{sB}, s{sWAVE}, 5120")
        a(f"s_add_u32 s{sB}, s{sB}, {WOIMG}")
        E = a.label("WOEND")
        for rep in range(3):
            if rep == 2:
                a(f"s_cmp_ge_u32 s{sWAVE}, 4")
                a(f"s_cbranch_scc1 {E}")
            a(f"s_mov_b32 m0, s{sB}")
            a("s_nop 0")
            for i in range(4):
                a(f"buffer_load_dwordx4 v{V+i}, {sr(sWO)}, s{sA} offen offset:{1024*i} lds")
            a("s_add_u32 m0, m0, 4096")
            a("s_nop 0")
            a(f"buffer_load_dwordx4 v{V+4}, {sr(sWO)}, s{sA} offen lds")
            if rep < 2:
                a(f"s_add_u32 s{sA}, s{sA}, {8*32*1280}")
                a(f"s_add_u32 s{sB}, s{sB}, {8*5120}")
        a(f"{E}:")

    def ostep(self):
        a = self.a
        PF = 216
        a("v_mov_b32 v4, 0"); a("v_mov_b32 v5, 0")
        a("v_lshlrev_b32 v2, 3, v1")
        a("s_mov_b64 exec, 0xffff")
        a(f"v_add_u32 v2, {KVZERO}, v2")
        a("ds_write_b64 v2, v[4:5]")
        a("s_mov_b64 exec, -1")
        mul = (65536 + 9) // 10
        for q in range(840): assert (q * mul) >> 16 == q // 10
        for i in range(2):
            a(f"v_add_u32 v2, {512*i}, v0")
            a(f"v_mul_u32_u24 v3, {mul}, v2")
            a("v_lshrrev_b32 v3, 16, v3")
            a("v_mul_u32_u24 v3, 32, v3")
            a(f"v_lshl_add_u32 v{6+i}, v2, 4, v3")
        a("v_cmp_gt_u32 vcc, 328, v0")
        a("v_mov_b32 v15, 0x40000000")
        a("v_lshlrev_b32 v8, 3, v0")
        a("v_cndmask_b32 v7, v15, v7, vcc")
        a(f"v_add_u32 v8, {KVIMG}, v8")
        a("v_bfe_u32 v9, v1, 2, 1")
        a("v_bfe_u32 v10, v1, 3, 2")
        a("v_and_b32 v11, 3, v1")
        a("v_lshl_add_u32 v10, v10, 2, v11")
        a("v_add_u32 v11, 16, v10")
        a("v_min_u32 v11, 20, v11")
        a("v_mul_u32_u24 v12, 21, v9")
        a(f"s_mul_i32 s{sA}, s{sP}, 42")
        a(f"v_add_u32 v12, s{sA}, v12")
        a("v_add_u32 v10, v10, v12")
        a("v_add_u32 v11, v11, v12")
        a("v_mul_u32_u24 v10, 80, v10")
        a("v_mul_u32_u24 v11, 80, v11")
        a("v_lshrrev_b32 v12, 5, v1")
        a("v_cmp_eq_u32 vcc, v12, v9")
        a("v_mov_b32 v13, 6720")
        a(f"s_mul_i32 s{sB}, s{sG}, {4*4032}")
        a("v_cndmask_b32 v10, v13, v10, vcc")
        a("v_cndmask_b32 v11, v13, v11, vcc")
        a(f"v_add_u32 v10, {KVIMG}, v10")
        a(f"v_add_u32 v11, {KVIMG}, v11")
        if ACC: a(f"s_add_u32 s{sB}, s{sB}, {ACC}")
        a(f"s_lshl_b32 s{sC}, s{sRB}, 2")
        a(f"s_add_u32 s{sC}, s{sC}, s{sCW}")
        a(f"s_lshl_b32 s{sC}, s{sC}, 3")
        a(f"s_add_u32 s{sC}, s{sC}, s{sG}")
        a(f"s_mul_i32 s{sC}, s{sC}, 5120")
        a(f"s_add_u32 s{sC}, s{sC}, {OB}")
        a(f"s_lshl_b32 s{sD}, s{sP}, 9")
        a(f"s_add_u32 s{sD}, s{sD}, s{sC}")
        a(f"s_add_u32 s{sD}, s{sD}, 4096")
        a(f"s_lshl_b32 s{sE}, s{sP}, 11")
        a(f"s_add_u32 s{sC}, s{sC}, s{sE}")
        a("v_lshlrev_b32 v12, 4, v1")
        a("v_lshlrev_b32 v13, 3, v1")
        S = a.label("NOKVPOLL")
        a(f"s_cmp_eq_u32 s{sWAVE}, 0")
        a(f"s_cbranch_scc0 {S}")
        a(f"s_lshl_b32 s{sA}, s{sG}, 8")
        a(f"s_add_u32 s{sA}, s{sA}, {KVC}")
        self.poll(sWS, f"s{sA}", 16, "kv")
        a(f"{S}:")
        a("s_barrier")
        self.st(5)
        a(f"buffer_load_dwordx4 v[16:19], v6, {sr(sWS)}, s{sB} offen sc1")
        a(f"buffer_load_dwordx4 v[20:23], v7, {sr(sWS)}, s{sB} offen sc1")
        a("s_waitcnt vmcnt(1)")
        a("v_cvt_pk_bf16_f32 v16, v16, v17")
        a("v_cvt_pk_bf16_f32 v17, v18, v19")
        a("ds_write_b64 v8, v[16:17]")
        a("s_waitcnt vmcnt(0)")
        a("v_cvt_pk_bf16_f32 v20, v20, v21")
        a("v_cvt_pk_bf16_f32 v21, v22, v23")
        a("v_cmp_gt_u32 vcc, 328, v0")
        a(f"s_and_saveexec_b64 s[{sEX}:{sEX+1}], vcc")
        a("ds_write_b64 v8, v[20:21] offset:4096")
        a(f"s_mov_b64 exec, s[{sEX}:{sEX+1}]")
        a("s_waitcnt lgkmcnt(0)")
        a("s_barrier")
        FA, FB, TA, TB = 24, 44, 64, 80
        for kk in range(5): a(f"ds_read_b128 {vr(FB+4*kk,4)}, v11 offset:{16*kk}")
        for kk in range(5): a(f"ds_read_b128 {vr(FA+4*kk,4)}, v10 offset:{16*kk}")
        for kk in range(5):
            a(f"s_waitcnt lgkmcnt({9-kk})")
            a(f"v_mfma_f32_32x32x16_bf16 {vr(TB,16)}, {vr(FB+4*kk,4)}, {vr(PF+4*kk,4)}, {'0' if kk == 0 else vr(TB,16)}")
        for kk in range(5):
            a(f"s_waitcnt lgkmcnt({4-kk})")
            a(f"v_mfma_f32_32x32x16_bf16 {vr(TA,16)}, {vr(FA+4*kk,4)}, {vr(PF+4*kk,4)}, {'0' if kk == 0 else vr(TA,16)}")
        a("s_nop 2")
        a(f"v_add_f32 v14, {f32(1e-6)}, v{TB+4}")
        a("v_rcp_f32 v14, v14")
        a("s_nop 0")
        for i in range(4): a(f"v_mul_f32 v{TB+i}, v14, v{TB+i}")
        a(f"v_cvt_pk_bf16_f32 v104, v{TB}, v{TB+1}")
        a(f"v_cvt_pk_bf16_f32 v105, v{TB+2}, v{TB+3}")
        a(f"buffer_store_dwordx2 v[104:105], v13, {sr(sWS)}, s{sD} offen sc1")
        a("s_nop 0")
        for b in range(2):
            for i in range(8): a(f"v_mul_f32 v{TA+8*b+i}, v14, v{TA+8*b+i}")
            for i in range(4): a(f"v_cvt_pk_bf16_f32 v{96+4*b+i}, v{TA+8*b+2*i}, v{TA+8*b+2*i+1}")
            a(f"buffer_store_dwordx4 {vr(96+4*b,4)}, v12, {sr(sWS)}, s{sC} offen offset:{1024*b} sc1")
        self.st(6)
        a("s_waitcnt vmcnt(0)")
        a("s_barrier")
        S = a.label("NOOSIG")
        a(f"s_cmp_eq_u32 s{sWAVE}, 0")
        a(f"s_cbranch_scc0 {S}")
        a(f"s_lshl_b32 s{sA}, s{sRB}, 8")
        a(f"s_add_u32 s{sA}, s{sA}, {OC}")
        self.signal(sWS, f"s{sA}")
        a(f"{S}:")

    def final(self):
        a = self.a
        a("v_lshrrev_b32 v2, 5, v1")
        a("v_bfe_u32 v3, v1, 4, 1")
        a("v_and_b32 v9, 15, v1")
        a("v_lshlrev_b32 v4, 10, v2")
        a("v_lshl_add_u32 v4, v3, 9, v4")
        a("v_lshl_add_u32 v4, v9, 4, v4")
        a("v_mul_u32_u24 v5, 5120, v2")
        a("v_lshl_add_u32 v5, v3, 8, v5")
        a("v_lshl_add_u32 v5, v9, 3, v5")
        a("v_bfe_u32 v10, v1, 2, 2")
        a("v_and_b32 v11, 3, v1")
        a("v_mul_u32_u24 v12, 20, v3")
        a("v_add_u32 v12, v12, v10")
        a("v_lshl_add_u32 v6, v2, 3, v12")
        a("v_mul_u32_u24 v6, 160, v6")
        a("v_lshl_add_u32 v6, v11, 3, v6")
        a("v_mul_u32_u24 v7, 80, v2")
        a("v_add3_u32 v7, v7, v12, 16")
        a("v_mul_u32_u24 v7, 160, v7")
        a("v_lshl_add_u32 v7, v11, 3, v7")
        a(f"s_mul_i32 s{sA}, s{sP}, 51200")
        a(f"s_add_u32 s{sA}, s{sA}, {WOIMG}")
        a(f"v_add_u32 v6, s{sA}, v6")
        a(f"v_add_u32 v7, s{sA}, v7")
        a(f"s_and_b32 s{sA}, s{sJ}, 3")
        a(f"s_lshl_b32 s{sB}, s{sXCD}, 2")
        a(f"s_add_u32 s{sA}, s{sA}, s{sB}")
        a(f"s_lshr_b32 s{sF}, s{sA}, 1")
        a(f"s_lshl_b32 s{sB}, s{sA}, 1")
        a(f"s_lshr_b32 s{sC}, s{sCW}, 1")
        a(f"s_add_u32 s{sB}, s{sB}, s{sC}")
        a(f"s_lshl_b32 s{sB}, s{sB}, 1")
        a(f"s_add_u32 s{sB}, s{sB}, s{sP}")
        a(f"s_mul_i32 s{sB}, s{sB}, {4*5120}")
        a(f"s_add_u32 s{sB}, s{sB}, {OB}")
        a(f"s_and_b32 s{sC}, s{sCW}, 1")
        a(f"s_lshl_b32 s{sD}, s{sC}, 7")
        a(f"s_add_u32 s{sD}, s{sD}, s{sB}")
        a(f"s_add_u32 s{sD}, s{sD}, 4096")
        a(f"s_lshl_b32 s{sC}, s{sC}, 8")
        a(f"s_add_u32 s{sB}, s{sB}, s{sC}")
        a(f"s_lshl_b32 s{sA}, s{sA}, 2")
        a(f"s_add_u32 s{sA}, s{sA}, s{sCW}")
        a(f"s_mul_i32 s{sA}, s{sA}, {16*2560}")
        a(f"s_lshr_b32 s{sC}, s{sJ}, 2")
        a(f"s_mul_i32 s{sC}, s{sC}, 160")
        a(f"s_add_u32 s{sE}, s{sA}, s{sC}")
        a("v_mul_u32_u24 v8, 2560, v9")
        a("v_lshrrev_b32 v2, 4, v1")
        a("v_lshl_add_u32 v8, v2, 3, v8")
        a(f"s_mul_i32 s{sA}, s{sCW}, 5120")
        a(f"s_add_u32 s{sA}, s{sA}, {RED}")
        a(f"v_lshl_add_u32 v14, v1, 4, s{sA}")
        S = a.label("NOOPOLL")
        a(f"s_cmp_eq_u32 s{sWAVE}, 0")
        a(f"s_cbranch_scc0 {S}")
        a(f"s_lshl_b32 s{sA}, s{sF}, 8")
        a(f"s_add_u32 s{sA}, s{sA}, {OC}")
        self.poll(sWS, f"s{sA}", 8, "o")
        a(f"{S}:")
        a("s_waitcnt vmcnt(0) lgkmcnt(0)")
        a("s_barrier")
        self.st(8)
        O, AC = 16, 56
        FR = [76, 96]
        steps = []
        n = 0
        for gl in range(4):
            if gl: a(f"s_add_u32 s{sB}, s{sB}, 5120")
            for p in range(2):
                a(f"buffer_load_dwordx4 {vr(O+4*n,4)}, v4, {sr(sWS)}, s{sB} offen offset:{2048*p} sc1")
                steps.append((O + 4 * n, 6, gl * 12800 + p * 6400, 640, 1)); n += 1
        for gp in range(2):
            if gp: a(f"s_add_u32 s{sD}, s{sD}, 10240")
            for j in range(2):
                a(f"buffer_load_dwordx2 {vr(O+4*n+2*j,2)}, v5, {sr(sWS)}, s{sD} offen offset:{512*j} sc1")
            steps.append((O + 4 * n, 7, gp * 25600, 6400, 2)); n += 1
        def rd(k):
            _, ad, off, js, _ = steps[k]
            return [f"ds_read_b64_tr_b16 {vr(FR[k&1]+4*t+2*j,2)}, v{ad} offset:{off+js*j+32*t}" for t in range(5) for j in range(2)]
        for s in rd(0): a(s)
        total = 12; done = 0
        for k in range(10):
            done += steps[k][4]
            a(f"s_waitcnt vmcnt({total-done})")
            nx = rd(k + 1) if k < 9 else []
            new = 0
            for t in range(5):
                a(f"s_waitcnt lgkmcnt({10 - 2*(t+1) + new})")
                a(f"v_mfma_f32_16x16x32_bf16 {vr(AC+4*t,4)}, {vr(FR[k&1]+4*t,4)}, {vr(steps[k][0],4)}, {'0' if k == 0 else vr(AC+4*t,4)}")
                for q in range(2):
                    if nx: a(nx.pop(0)); new += 1
        self.st(9)
        Z = a.label("FINLO")
        a(f"s_cmp_eq_u32 s{sP}, 0")
        a(f"s_cbranch_scc1 {Z}")
        a("s_nop 5")
        for t in range(5): a(f"ds_write_b128 v14, {vr(AC+4*t,4)} offset:{1024*t}")
        a("s_waitcnt lgkmcnt(0)")
        a("s_barrier")
        a("s_branch L_FINI")
        a(f"{Z}:")
        a("s_barrier")
        for t in range(5): a(f"ds_read_b128 {vr(76+4*t,4)}, v14 offset:{1024*t}")
        for t in range(5):
            a(f"s_waitcnt lgkmcnt({4-t})")
            for i in range(4): a(f"v_add_f32 v{AC+4*t+i}, v{AC+4*t+i}, v{76+4*t+i}")
            a(f"v_cvt_pk_bf16_f32 v{96+2*t}, v{AC+4*t}, v{AC+4*t+1}")
            a(f"v_cvt_pk_bf16_f32 v{97+2*t}, v{AC+4*t+2}, v{AC+4*t+3}")
            a(f"buffer_store_dwordx2 {vr(96+2*t,2)}, v8, {sr(sOUT)}, s{sE} offen offset:{32*t}")
        a("L_FINI:")

    def b1(self):
        a = self.a
        a(f"s_sub_u32 s{sA}, s2, 128")
        a(f"s_mul_i32 s{sB}, s{sA}, 205")
        a(f"s_lshr_b32 s{sB}, s{sB}, 10")
        for u in range(80): assert (u * 205) >> 10 == u // 5
        a(f"s_mul_i32 s{sC}, s{sB}, 5")
        a(f"s_sub_u32 s{sC}, s{sA}, s{sC}")
        a("v_lshrrev_b32 v2, 4, v1")
        a("v_and_b32 v3, 15, v1")
        a("v_lshlrev_b32 v9, 2, v2")
        a("v_xor_b32 v3, v3, v9")
        a(f"v_mul_u32_u24 v2, {16*1280}, v2")
        a("v_lshl_add_u32 v4, v3, 4, v2")
        for i in range(1, 4): a(f"v_add_u32 v{4+i}, {i*(81920-1024)}, v4")
        a(f"s_lshl_b32 s{sD}, s{sWAVE}, 8")
        a(f"s_add_u32 s{sD}, s{sD}, s{sB}")
        a(f"s_mul_i32 s{sD}, s{sD}, 1280")
        a(f"s_lshl_b32 s{sE}, s{sC}, 8")
        a(f"s_add_u32 s{sD}, s{sD}, s{sE}")
        a(f"s_lshl_b32 m0, s{sWAVE}, 12")
        a("s_nop 0")
        for i in range(4):
            a(f"buffer_load_dwordx4 v{4+i}, {sr(sBX)}, s{sD} offen offset:{1024*i} lds")
        AF = 16
        a("v_bfe_u32 v2, v1, 1, 4")
        a(f"s_lshl_b32 s{sD}, s{sCW}, 4")
        a(f"v_add_u32 v2, s{sD}, v2")
        a("v_and_b32 v3, 1, v1")
        a(f"v_mul_u32_u24 v9, s{sB}, v2")
        a("v_lshl_add_u32 v9, v3, 9, v9")
        a("v_lshl_add_u32 v10, v2, 1, v3")
        a("v_cmp_eq_u32 vcc, 1, v10")
        a("v_mov_b32 v11, 64")
        a("v_lshrrev_b32 v12, 5, v1")
        a("v_cndmask_b32 v2, v2, v11, vcc")
        a("v_cndmask_b32 v9, v9, 0, vcc")
        a("v_lshlrev_b32 v12, 7, v12")
        a("v_mul_u32_u24 v12, v2, v12")
        a("v_add_u32 v9, v9, v12")
        a("v_and_b32 v9, 2047, v9")
        a("v_cvt_f32_u32 v9, v9")
        a("v_cvt_f32_u32 v2, v2")
        a(f"v_mul_f32 v9, {f32(1/2048)}, v9")
        a(f"v_mul_f32 v2, {f32(1/128)}, v2")
        for ks in range(8):
            for e in range(0, 8, 2):
                for z in range(2):
                    k = 16 * ks + e + z
                    a(f"s_mov_b32 s{sD}, {f32(float(k))}")
                    a(f"v_fma_f32 v{10+z}, v2, s{sD}, v9")
                a("v_cos_f32 v12, v10")
                a("v_cos_f32 v13, v11")
                a("s_nop 0")
                a(f"v_cvt_pk_bf16_f32 v{AF+4*ks+e//2}, v12, v13")
        self.trlane(10, 11, 12, 9)
        a(f"s_lshl_b32 s{sD}, s{sP}, 1")
        a(f"v_xor_b32 v13, s{sD}, v11")
        a("v_lshl_add_u32 v11, v9, 3, v11")
        a("v_lshlrev_b32 v11, 8, v11")
        a("v_lshl_add_u32 v11, v10, 5, v11")
        a("v_lshl_add_u32 v11, v12, 3, v11")
        a("v_lshl_add_u32 v4, v13, 6, v11")
        a("v_xor_b32 v5, 64, v4")
        a("v_and_b32 v2, 31, v1")
        a("v_lshlrev_b32 v6, 2, v2")
        a("v_mul_u32_u24 v3, 81920, v9")
        a("v_add_u32 v6, v6, v3")
        a(f"s_mul_i32 s{sD}, s{sCW}, {16*40960}")
        a(f"s_lshl_b32 s{sC}, s{sC}, 2")
        a(f"s_lshl_b32 s{sE}, s{sP}, 1")
        a(f"s_add_u32 s{sC}, s{sC}, s{sE}")
        a(f"s_lshl_b32 s{sC}, s{sC}, 11")
        a(f"s_add_u32 s{sD}, s{sD}, s{sC}")
        a(f"s_lshl_b32 s{sB}, s{sB}, 7")
        a(f"s_add_u32 s{sD}, s{sD}, s{sB}")
        a(f"s_add_u32 s{sD}, s{sD}, {UB}")
        a("s_waitcnt vmcnt(0)")
        a("s_barrier")
        XF, D = 48, 112
        order = [(nb, ks) for nb in range(2) for ks in range(8)]
        def rd(k):
            nb, ks = order[k]
            for j in range(2):
                a(f"ds_read_b64_tr_b16 {vr(XF+32*nb+4*ks+2*j,2)}, v{4+nb} offset:{(16*ks+4*j)*256}")
        for k in range(6): rd(k)
        for k in range(16):
            nb, ks = order[k]
            a(f"s_waitcnt lgkmcnt({2*min(5, 15-k)})")
            a(f"v_mfma_f32_32x32x16_bf16 {vr(D+16*nb,16)}, {vr(AF+4*ks,4)}, {vr(XF+32*nb+4*ks,4)}, {'0' if ks == 0 else vr(D+16*nb,16)}")
            if k + 6 < 16: rd(k + 6)
        a("s_nop 1")
        for nb in range(2):
            if nb == 1: a("s_nop 0")
            for j in range(4):
                for ii in range(2):
                    t = 16 + 8 * nb + 2 * j + ii
                    a(f"v_cvt_pk_bf16_f32 v{t}, v{D+16*nb+4*j+2*ii}, v{D+16*nb+4*j+2*ii+1}")
                    a(f"s_add_u32 s{sE}, s{sD}, {(4*j+ii)*40960 + nb*2048}")
                    a(f"buffer_store_dword v{t}, v6, {sr(sWS)}, s{sE} offen sc1")
        a("s_barrier")

    def b2(self):
        a = self.a
        S = a.label("NOB1POLL")
        a(f"s_cmp_eq_u32 s{sWAVE}, 0")
        a(f"s_cbranch_scc0 {S}")
        a(f"s_movk_i32 s{sT2}, 128")
        self.poll(sDBG, f"s{sT2}", NB1, "b1")
        a(f"{S}:")
        a("s_barrier")
        UD = 16
        a("v_and_b32 v2, 31, v1")
        a("v_lshrrev_b32 v9, 5, v1")
        a("v_lshlrev_b32 v4, 2, v2")
        a("v_lshl_add_u32 v4, v9, 9, v4")
        a(f"s_mul_i32 s{sT2}, s{sA}, 40960")
        a(f"s_lshl_b32 s{sT3}, s{sWAVE}, 11")
        a(f"s_add_u32 s{sT2}, s{sT2}, s{sT3}")
        a(f"s_add_u32 s{sT2}, s{sT2}, {UB}")
        for tl in range(3):
            if tl == 2:
                a(f"s_cmp_lt_u32 s{sWAVE}, 4")
                a(f"s_cselect_b32 s{sT3}, {8*2048}, 0")
                a(f"s_add_u32 s{sT2}, s{sT2}, s{sT3}")
            elif tl == 1:
                a(f"s_add_u32 s{sT2}, s{sT2}, {8*2048}")
            for ks in range(2):
                for e4 in range(4):
                    a(f"buffer_load_dword v{UD+8*tl+4*ks+e4}, v4, {sr(sWS)}, s{sT2} offen offset:{1024*ks+128*e4} sc1")
        M2 = 40
        a("v_bfe_u32 v3, v1, 1, 3")
        a(f"v_add_u32 v3, s{sB}, v3")
        a(f"v_lshl_add_u32 v3, v3, 7, s{sC}")
        a("v_cvt_f32_u32 v3, v3")
        a(f"v_mul_f32 v3, {f32(1/2048)}, v3")
        a("v_and_b32 v5, 1, v1")
        a("v_cvt_f32_u32 v5, v5")
        a(f"v_mul_f32 v5, {f32(0.25)}, v5")
        a("v_lshlrev_b32 v6, 2, v9")
        a("v_cvt_f32_u32 v6, v6")
        a("v_fma_f32 v5, v3, v6, v5")
        for ks in range(2):
            for e4 in range(4):
                a(f"s_mov_b32 s{sT3}, {f32(float(8*ks+e4))}")
                a(f"v_fma_f32 v10, v3, s{sT3}, v5")
                a(f"v_subrev_f32 v11, s{sF}, v10")
                a("v_cos_f32 v10, v10")
                a("v_cos_f32 v11, v11")
                a("s_nop 0")
                a(f"v_mul_f32 v10, s{sD}, v10")
                a(f"v_mul_f32 v11, s{sE}, v11")
                a(f"v_cvt_pk_bf16_f32 v{M2+4*ks+e4}, v10, v11")
        F20 = 48
        a("v_bfe_u32 v5, v1, 2, 1")
        a("v_mul_u32_u24 v5, 10, v5")
        a("v_bfe_u32 v6, v1, 1, 1")
        a("v_add_u32 v5, v5, v6")
        a("v_bfe_u32 v6, v1, 3, 2")
        a("v_lshl_add_u32 v6, v6, 1, v5")
        a("v_add_u32 v7, 8, v5")
        a("v_cvt_f32_u32 v6, v6")
        a("v_cvt_f32_u32 v7, v7")
        a(f"v_mul_f32 v6, {f32(0.05)}, v6")
        a(f"v_mul_f32 v7, {f32(0.05)}, v7")
        a("v_and_b32 v5, 1, v1")
        a("v_cvt_f32_u32 v5, v5")
        a(f"v_mul_f32 v5, {f32(0.25)}, v5")
        a("v_cmp_eq_u32 vcc, 0, v9")
        for ks in range(3):
            for jj in range(2):
                k0 = 4 * ks + jj; k1 = k0 + 2
                def par(kc): return (4.0 * (kc % 5), 0.25 if kc >= 5 else 0.0)
                d0, c0 = par(k0); d1, c1 = par(k1)
                a(f"v_mov_b32 v12, {f32(d1)}")
                a(f"v_mov_b32 v13, {f32(d0)}")
                a("v_cndmask_b32 v12, v12, v13, vcc")
                a(f"v_mov_b32 v13, {f32(c1)}")
                a(f"v_mov_b32 v14, {f32(c0)}")
                a("v_cndmask_b32 v13, v13, v14, vcc")
                a("v_sub_f32 v13, v5, v13")
                for tl in range(2):
                    st = 6 + tl
                    a(f"v_fma_f32 v10, v{st}, v12, v13")
                    for e in range(0, 4, 2):
                        a(f"v_add_f32 v11, v10, v{st}")
                        a("v_cos_f32 v14, v10")
                        a("v_cos_f32 v15, v11")
                        if e == 0: a(f"v_add_f32 v10, v11, v{st}")
                        else: a("s_nop 0")
                        dst = F20 + 12 * tl + 4 * ks + 2 * jj + e // 2
                        a(f"v_cvt_pk_bf16_f32 v{dst}, v14, v15")
                        if k1 >= 10: a(f"v_cndmask_b32 v{dst}, 0, v{dst}, vcc")
        TW = 72
        a("v_cvt_f32_u32 v5, v2")
        a(f"v_mul_f32 v5, {f32(1/640)}, v5")
        a("v_mul_u32_u24 v6, 10, v9")
        a("v_cvt_f32_u32 v6, v6")
        a("v_mul_f32 v6, v5, v6")
        for q in range(11):
            if q < 10:
                a(f"s_mov_b32 s{sT3}, {f32(float(q))}")
                a(f"v_fma_f32 v10, v5, s{sT3}, v6")
            else:
                a(f"v_mul_f32 v10, {f32(20.0)}, v5")
            a(f"v_cos_f32 v{TW+2*q}, v10")
            a(f"v_sin_f32 v{TW+2*q+1}, v10")
        F32 = 96
        a("v_cvt_f32_u32 v5, v2")
        a(f"v_mul_f32 v5, {f32(1/32)}, v5")
        a("v_lshlrev_b32 v6, 2, v9")
        a("v_cvt_f32_u32 v6, v6")
        a("v_mul_f32 v6, v5, v6")
        for ks in range(4):
            for q in range(4):
                a(f"s_mov_b32 s{sT3}, {f32(float(8*ks+q))}")
                a(f"v_fma_f32 v10, v5, s{sT3}, v6")
                a("v_cos_f32 v11, v10")
                a("v_sin_f32 v12, v10")
                a("s_nop 0")
                a(f"v_cvt_pk_bf16_f32 v{F32+4*ks+q}, v11, v12")
        DA = 112
        a(f"v_mul_u32_u24 v5, {ZS}, v2")
        a("v_lshl_add_u32 v5, v9, 3, v5")
        a(f"s_lshl_b32 s{sT3}, s{sWAVE}, 6")
        a(f"s_add_u32 s{sT3}, s{sT3}, {ZIMG}")
        a(f"v_add_u32 v5, s{sT3}, v5")
        for tl in range(3):
            a(f"s_waitcnt vmcnt({8*(2-tl)})")
            for ks in range(2):
                a(f"v_mfma_f32_32x32x16_bf16 {vr(DA+16*tl,16)}, {vr(UD+8*tl+4*ks,4)}, {vr(M2+4*ks,4)}, {'0' if ks == 0 else vr(DA+16*tl,16)}")
        a("s_nop 6")
        a(f"s_mov_b32 s{sEX}, 0xffff")
        a(f"s_mov_b32 s{sEX+1}, 0xffff")
        a(f"s_mov_b64 exec, s[{sEX}:{sEX+1}]")
        E = a.label("ZDONE")
        for tl in range(3):
            if tl == 2:
                a(f"s_cmp_ge_u32 s{sWAVE}, 4")
                a(f"s_cbranch_scc1 {E}")
            for j in range(4):
                t = 160 + 8 * tl + 2 * j
                a(f"v_cvt_pk_bf16_f32 v{t}, v{DA+16*tl+4*j}, v{DA+16*tl+4*j+1}")
                a(f"v_cvt_pk_bf16_f32 v{t+1}, v{DA+16*tl+4*j+2}, v{DA+16*tl+4*j+3}")
                a(f"ds_write_b64 v5, {vr(t,2)} offset:{512*tl+16*j}")
        a(f"{E}:")
        a("s_mov_b64 exec, -1")
        self.trlane(10, 11, 12, 9)
        a("v_lshlrev_b32 v11, 6, v11")
        a("v_lshl_add_u32 v11, v10, 5, v11")
        a("v_lshl_add_u32 v11, v12, 3, v11")
        a(f"s_mul_i32 s{sT3}, s{sWAVE}, {2*ZS}")
        a(f"s_add_u32 s{sT3}, s{sT3}, {ZIMG}")
        a(f"v_add_u32 v11, s{sT3}, v11")
        a("v_lshl_add_u32 v6, v9, 9, v11")
        a(f"v_mul_u32_u24 v7, {512 + ZS - 1280}, v9")
        a("v_add_u32 v7, v7, v11")
        a(f"s_mul_i32 s{sT3}, s{sWAVE}, {VBW}")
        a(f"s_add_u32 s{sT3}, s{sT3}, {VB}")
        a(f"v_mul_u32_u24 v8, {10*VBS}, v9")
        a("v_lshl_add_u32 v8, v2, 2, v8")
        a(f"v_add_u32 v8, s{sT3}, v8")
        a("v_bfe_u32 v12, v1, 3, 2")
        a("v_and_b32 v13, 3, v1")
        a("v_lshl_add_u32 v12, v12, 2, v13")
        a("v_min_u32 v12, 10, v12")
        a("v_bfe_u32 v13, v1, 2, 1")
        a("v_mul_u32_u24 v13, 10, v13")
        a("v_add_u32 v12, v12, v13")
        a(f"v_mul_u32_u24 v12, {VBS}, v12")
        a("v_lshl_add_u32 v12, v9, 4, v12")
        a(f"v_add_u32 v12, s{sT3}, v12")
        a("s_waitcnt lgkmcnt(0)")
        a("s_barrier")
        ZF = 16
        pad = ZS - 1280
        a(f"ds_read_b64_tr_b16 {vr(ZF,2)}, v6")
        a(f"ds_read_b64_tr_b16 {vr(ZF+2,2)}, v6 offset:256")
        a(f"ds_read_b64_tr_b16 {vr(ZF+4,2)}, v7 offset:1024")
        a(f"ds_read_b64_tr_b16 {vr(ZF+6,2)}, v6 offset:{1280+pad}")
        a(f"ds_read_b64_tr_b16 {vr(ZF+8,2)}, v11 offset:{2048+pad}")
        a(f"ds_read_b64_tr_b16 {vr(ZF+10,2)}, v11 offset:{2304+pad}")
        DB = 112
        for ks in range(3):
            a(f"s_waitcnt lgkmcnt({4-2*ks})")
            for tl in range(2):
                a(f"v_mfma_f32_32x32x16_bf16 {vr(DB+16*tl,16)}, {vr(F20+12*tl+4*ks,4)}, {vr(ZF+4*ks,4)}, {'0' if ks == 0 else vr(DB+16*tl,16)}")
        a("s_nop 7")
        a("s_nop 3")
        for q in list(range(10)) + [10]:
            src = DB + 2 * q if q < 10 else DB
            cw, sw = TW + 2 * q, TW + 2 * q + 1
            t = 160 + 3 * q
            a(f"v_mul_f32 v{t}, v{src}, v{cw}")
            a(f"v_mul_f32 v{t+1}, v{src+1}, v{cw}")
            a(f"v_fma_f32 v{t}, v{src+1}, v{sw}, v{t}")
            a(f"v_fma_f32 v{t+1}, -v{src}, v{sw}, v{t+1}")
            a(f"v_cvt_pk_bf16_f32 v{t+2}, v{t}, v{t+1}")
            if q == 10:
                a("s_mov_b32 exec_hi, 0")
                a(f"ds_write_b32 v8, v{t+2} offset:{20*VBS}")
                a("s_mov_b64 exec, -1")
            else:
                a(f"ds_write_b32 v8, v{t+2} offset:{q*VBS}")
        a(f"s_add_u32 s{sT2}, s{sB}, s{sWAVE}")
        a(f"s_lshl_b32 s{sT2}, s{sT2}, 7")
        a(f"s_add_u32 s{sT2}, s{sT2}, s{sT0}")
        a(f"s_sub_u32 s{sT3}, 2048, s{sT2}")
        a(f"s_and_b32 s{sT3}, s{sT3}, 2047")
        a(f"s_mul_i32 s{sT2}, s{sT2}, 2560")
        a(f"s_mul_i32 s{sT3}, s{sT3}, 2560")
        a("v_mul_u32_u24 v5, 40, v2")
        a("v_mul_u32_u24 v6, 20, v9")
        a("v_add_u32 v5, v5, v6")
        a(f"v_sub_u32 v6, {1280+1260}, v5")
        a("v_add_u32 v5, 1280, v5")
        a("s_waitcnt lgkmcnt(0)")
        for ks in range(4): a(f"ds_read_b128 {vr(16+4*ks,4)}, v12 offset:{32*ks}")
        DC = 144
        for ks in range(4):
            a(f"s_waitcnt lgkmcnt({3-ks})")
            a(f"v_mfma_f32_32x32x16_bf16 {vr(DC,16)}, {vr(16+4*ks,4)}, {vr(F32+4*ks,4)}, {'0' if ks == 0 else vr(DC,16)}")
        N = a.label("NOYST")
        a(f"s_cmp_ge_u32 s{sWAVE}, s{sT1}")
        a(f"s_cbranch_scc1 {N}")
        a("s_nop 7")
        a("s_nop 1")
        for i in range(5): a(f"v_cvt_pk_bf16_f32 v{32+i}, v{DC+2*i}, v{DC+2*i+1}")
        for i in range(5): a(f"v_cvt_pk_bf16_f32 v{40+i}, v{DC+10-2*i}, v{DC+9-2*i}")
        a(f"buffer_store_dwordx4 v[32:35], v5, {sr(sOUT)}, s{sT2} offen")
        a(f"buffer_store_dword v36, v5, {sr(sOUT)}, s{sT2} offen offset:16")
        a(f"buffer_store_dwordx4 v[40:43], v6, {sr(sOUT)}, s{sT3} offen")
        a(f"buffer_store_dword v44, v6, {sr(sOUT)}, s{sT3} offen offset:16")
        a(f"{N}:")

    def build(self):
        a = self.a
        self.prologue()
        a(f"s_cmp_ge_u32 s{sJ}, 16")
        a("s_cbranch_scc1 L_QB")
        a(f"s_cmp_ge_u32 s{sWAVE}, 4")
        a("s_cbranch_scc0 L_KV_CP")
        self.loader(True, "KV")
        a("s_branch L_PHI")
        a("L_KV_CP:")
        self.compute(True, "KV")
        a("s_branch L_PHI")
        a("L_QB:")
        a(f"s_cmp_ge_u32 s2, {128+NB1}")
        a("s_cbranch_scc1 L_ZERO")
        self.b1()
        a(f"s_movk_i32 s{sSIG}, 128")
        a("s_branch L_Q")
        a("L_ZERO:")
        a(f"s_mov_b32 s{sSIG}, 0")
        a(f"s_cmp_ge_u32 s{sWAVE}, 4")
        a("s_cbranch_scc1 L_Q")
        for r in range(4, 8): a(f"v_mov_b32 v{r}, 0")
        a("v_lshlrev_b32 v2, 4, v0")
        a(f"s_sub_u32 s{sA}, s2, {128+NB1}")
        a(f"s_lshl_b32 s{sA}, s{sA}, 12")
        a(f"buffer_store_dwordx4 v[4:7], v2, {sr(sWS)}, s{sA} offen sc1")
        a("L_Q:")
        self.st(3)
        a(f"s_cmp_ge_u32 s{sWAVE}, 4")
        a("s_cbranch_scc0 L_Q_CP")
        self.loader(False, "Q")
        a("s_branch L_PHI")
        a("L_Q_CP:")
        self.compute(False, "Q")
        a("L_PHI:")
        self.phi()
        if self.stamps: self.st(3 if False else 10)
        a(f"s_cmp_ge_u32 s{sJ}, 16")
        a("s_cbranch_scc1 L_QB2")
        self.kvpart()
        self.wo_dma()
        a(f"s_lshl_b32 s{sA}, s{sXCD}, 3")
        a(f"s_lshr_b32 s{sB}, s{sJL}, 1")
        a(f"s_add_u32 s{sA}, s{sA}, s{sB}")
        a(f"s_and_b32 s{sB}, s{sJL}, 1")
        a(f"s_lshl_b32 s{sB}, s{sB}, 3")
        a(f"s_mov_b32 s{sC}, 0")
        a(f"s_mov_b32 s{sD}, 1.0")
        a(f"s_mov_b32 s{sE}, 1.0")
        a(f"s_mov_b32 s{sF}, {f32(0.25)}")
        a(f"s_mov_b32 s{sT0}, s{sA}")
        a(f"s_mov_b32 s{sT1}, 8")
        a(f"s_cmp_lg_u32 s{sA}, 0")
        a("s_cbranch_scc1 L_B2")
        a(f"s_mov_b32 s{sE}, 0")
        a(f"s_cmp_eq_u32 s{sB}, 0")
        a("s_cbranch_scc1 L_B2")
        a(f"s_mov_b32 s{sB}, 0")
        a(f"s_mov_b32 s{sC}, 64")
        a(f"s_mov_b32 s{sD}, 0")
        a(f"s_mov_b32 s{sE}, 1.0")
        a(f"s_mov_b32 s{sF}, 0")
        a(f"s_mov_b32 s{sT0}, 64")
        a("s_branch L_B2")
        a("L_QB2:")
        self.wo_dma()
        a("s_cmp_lg_u32 s2, 255")
        a("s_cbranch_scc1 L_OSTEP")
        a(f"s_mov_b32 s{sA}, 0")
        a(f"s_mov_b32 s{sB}, 8")
        a(f"s_mov_b32 s{sC}, 0")
        a(f"s_mov_b32 s{sD}, 1.0")
        a(f"s_mov_b32 s{sE}, 0")
        a(f"s_mov_b32 s{sF}, {f32(0.25)}")
        a(f"s_mov_b32 s{sT0}, 0")
        a(f"s_mov_b32 s{sT1}, 1")
        a("L_B2:")
        self.b2()
        self.st(7)
        a(f"s_cmp_lt_u32 s{sJ}, 16")
        a("s_cbranch_scc1 L_FINAL")
        a("s_barrier")
        a("L_OSTEP:")
        self.st(4)
        self.ostep()
        a("L_FINAL:")
        self.final()
        if self.stamps and self.dbgspan:
            self.st(11)
            a("s_waitcnt lgkmcnt(0)")
            a("v_mov_b32 v2, 0")
            a("s_mov_b64 exec, 1")
            a(f"s_and_b32 s{sA}, s{sWAVE}, 3")
            a(f"s_cmp_lg_u32 s{sA}, 0")
            a("s_cbranch_scc1 L_END")
            a(f"s_not_b32 s{ST0}, s{ST0}")
            for n, i in enumerate(self.dbgspan):
                a(f"v_mov_b32 v4, s{ST0+2*i}")
                a(f"buffer_atomic_umax v4, v2, {sr(sDBG)}, 0 offen offset:{4*(n+1)}")
        elif self.stamps:
            self.st(11)
            a("s_waitcnt lgkmcnt(0)")
            a(f"s_lshl_b32 s{sA}, s2, 3")
            a(f"s_add_u32 s{sA}, s{sA}, s{sWAVE}")
            a(f"s_lshl_b32 s{sA}, s{sA}, 7")
            a(f"s_add_u32 s{sA}, s{sA}, {STAMPS}")
            a("v_mov_b32 v2, 0")
            a("s_mov_b64 exec, 1")
            for i in range(12):
                a(f"v_mov_b32 v4, s{ST0+2*i}")
                a(f"v_mov_b32 v5, s{ST0+2*i+1}")
                a(f"buffer_store_dwordx2 v[4:5], v2, {sr(sWS)}, s{sA} offen offset:{8*i}")
        a("L_END:")
        a("s_endpgm")
        K = NAME + "_kernel"
        head = open("header.txt").read() if True else ""
        txt = head + f"; @launch grid=(256,1,1) block=(512,1,1) lds={LDS_BYTES}\n.amdgcn_target \"amdgcn-amd-amdhsa--gfx950\"\n"
        txt += kernel_head(K) + a.text() + kernel_desc(K, 256, 102, 256)
        return txt

if __name__ == "__main__":
    out = sys.argv[1]
    g = Gen(stamps="--stamps" in sys.argv or "--dbgspan" in sys.argv, rot="--norot" not in sys.argv,
            dbgspan=list(range(12)) if "--dbgspan" in sys.argv else None)
    txt = g.build()
    open(out, "w").write(txt)
    bad = hazard.check(txt)
    print("lines", txt.count("\n"), "hazards", len(bad))
```

```python
import sys, math, struct
from asmlib import Asm, NAME, kernel_head, kernel_desc
import hazard

ACC = 0
KVC = 0x20000
OC = 0x20800
OB = 0x40000
UB = 0x300000
STAMPS = 0x600000
DUMP = 0x800000
WS_BYTES = 0x1000000
LDS_BYTES = 163840
WPHI = 147456
KVIMG = 155136
KVZERO = KVIMG + 6720
HAND = 0
VIMG = 12288; VS = 168
PHIMG = 73728; PS = 336
WOIMG = 16384
ZIMG = 118784; ZS = 1288
VB = 139392; VBS = 144; VBW = 21 * 144
RED = 118784
NINIT = 48; NB1 = 80
SPIN = 1 << 22

sX, sW, sPHI, sWO, sBX, sOUT, sDBG, sWS = 8, 12, 16, 20, 24, 28, 32, 36
sWAVE, sRB, sG, sJL, sXCD, sJ, sROT, sCW = 40, 41, 42, 43, 44, 45, 46, 47
sIT, sSLOT, sXK, sWK, sKI, sXROW, sWROW, sSIG = 48, 49, 50, 51, 52, 53, 54, 55
sT0, sT1, sT2, sT3, sT4, sT5 = 56, 57, 58, 59, 60, 61
sP, sSPIN = 62, 63
sEX = 64
sA, sB, sC, sD, sE, sF = 66, 67, 68, 69, 70, 71
ST0 = 72

def f32(x): return "0x%08x" % struct.unpack("<I", struct.pack("<f", x))[0]
def vr(b, n=1): return f"v{b}" if n == 1 else f"v[{b}:{b+n-1}]"
def sr(b, n=4): return f"s[{b}:{b+n-1}]"

class Gen:
    def __init__(self, stamps=False, dump=None, rot=True, dbgspan=None, stretch=None):
        self.stretch = stretch
        self.a = Asm(); self.stamps = stamps; self.dump = dump; self.rot = rot; self.dbgspan = dbgspan
    def st(self, i):
        if self.stamps: self.a(f"s_memrealtime s[{ST0+2*i}:{ST0+2*i+1}]")
    def align8(self):
        self.a(".p2align 3")

    def poll(self, srd, soff, target, name):
        a = self.a
        L = a.label("POLL"); D = a.label("POLLD")
        a("v_mov_b32 v2, 0")
        a(f"s_mov_b32 s{sSPIN}, {SPIN}")
        a(f"{L}:")
        a(f"buffer_load_dword v3, v2, {sr(srd)}, {soff} offen sc1")
        a("s_waitcnt vmcnt(0)")
        a(f"v_readfirstlane_b32 s{sT5}, v3")
        a(f"s_sub_u32 s{sSPIN}, s{sSPIN}, 1")
        a(f"s_cbranch_scc1 {D}")
        a(f"s_cmp_lt_u32 s{sT5}, {target}")
        a(f"s_cbranch_scc1 {L}")
        a(f"{D}:")
    def signal(self, srd, soff):
        a = self.a
        a("v_mov_b32 v2, 0")
        a("v_mov_b32 v3, 1")
        a(f"s_mov_b64 s[{sEX}:{sEX+1}], exec")
        a("s_mov_b64 exec, 1")
        a(f"buffer_atomic_add v3, v2, {sr(srd)}, {soff} offen")
        a(f"s_mov_b64 exec, s[{sEX}:{sEX+1}]")
    def trlane(self, blk, r, cq, h):
        a = self.a
        a(f"v_bfe_u32 v{blk}, v1, 4, 1")
        a(f"v_bfe_u32 v{r}, v1, 2, 2")
        a(f"v_and_b32 v{cq}, 3, v1")
        a(f"v_lshrrev_b32 v{h}, 5, v1")

    def prologue(self):
        a = self.a
        a("s_cmp_ge_u32 s2, 256")
        a("s_cbranch_scc1 L_END")
        a(f"s_load_dwordx2 s[{sX}:{sX+1}], s[0:1], 0")
        a(f"s_load_dwordx2 s[{sW}:{sW+1}], s[0:1], 8")
        a(f"s_load_dwordx2 s[{sBX}:{sBX+1}], s[0:1], 32")
        a(f"s_load_dwordx2 s[{sWS}:{sWS+1}], s[0:1], 88")
        a("s_load_dwordx4 s[4:7], s[0:1], 16")
        a("s_load_dwordx4 s[56:59], s[0:1], 72")
        self.st(0)
        if self.stamps:
            for i in range(1, 12): a(f"s_mov_b64 s[{ST0+2*i}:{ST0+2*i+1}], 0")
        a("v_lshrrev_b32 v2, 6, v0")
        a("v_and_b32 v1, 63, v0")
        a(f"v_readfirstlane_b32 s{sWAVE}, v2")
        a(f"s_and_b32 s{sXCD}, s2, 7")
        a(f"s_lshr_b32 s{sJ}, s2, 3")
        a(f"s_and_b32 s{sJL}, s{sJ}, 15")
        a(f"s_and_b32 s{sRB}, s{sJL}, 3")
        a(f"s_lshr_b32 s{sG}, s{sJL}, 2")
        if self.rot:
            a(f"s_add_u32 s{sROT}, s{sRB}, s{sG}")
            a(f"s_and_b32 s{sROT}, s{sROT}, 3")
            a(f"s_mul_i32 s{sROT}, s{sROT}, 5")
            a(f"s_add_u32 s{sROT}, s{sROT}, 1")
            a(f"s_lshr_b32 s{sROT}, s{sROT}, 1")
        else:
            a(f"s_mov_b32 s{sROT}, 0")
        a(f"s_and_b32 s{sA}, s{sXCD}, 3")
        a(f"s_lshl2_add_u32 s{sRB}, s{sA}, s{sRB}")
        a(f"s_lshr_b32 s{sA}, s{sXCD}, 2")
        a(f"s_lshl2_add_u32 s{sG}, s{sA}, s{sG}")
        a(f"s_and_b32 s{sCW}, s{sWAVE}, 3")
        a(f"s_lshr_b32 s{sP}, s{sWAVE}, 2")
        for s, nb in ((sX, 2048*1280), (sW, 640*3840), (sPHI, 32*800), (sWO, 640*1280), (sBX, 2048*1280),
                      (sOUT, 2048*2560), (sDBG, 256), (sWS, WS_BYTES)):
            a(f"s_mov_b32 s{s+2}, {nb}")
            a(f"s_mov_b32 s{s+3}, 0x20000")
        a("s_waitcnt lgkmcnt(0)")
        a(f"s_mov_b64 s[{sPHI}:{sPHI+1}], s[4:5]")
        a(f"s_mov_b64 s[{sWO}:{sWO+1}], s[6:7]")
        a(f"s_mov_b64 s[{sOUT}:{sOUT+1}], s[56:57]")
        a(f"s_mov_b64 s[{sDBG}:{sDBG+1}], s[58:59]")

    def loader(self, kv, tag):
        a = self.a
        NP = 5 if kv else 3
        CPR = 20 if kv else 12
        SLOT = 16384 + NP * 4096
        per = 4 + NP
        vX, vW = 4, 8
        a("v_lshrrev_b32 v2, 3, v1")
        a("v_and_b32 v3, 7, v1")
        a("v_lshrrev_b32 v13, 4, v1")
        a("v_xor_b32 v3, v3, v13")
        a("v_mul_u32_u24 v2, 1280, v2")
        a(f"v_lshl_add_u32 v{vX}, v3, 4, v2")
        a(f"v_xor_b32 v3, 64, v{vX}")
        a(f"v_add_u32 v{vX+1}, {10240-1024}, v3")
        a(f"v_add_u32 v{vX+2}, {2*(10240-1024)}, v{vX}")
        a(f"v_add_u32 v{vX+3}, {3*(10240-1024)}, v3")
        a(f"s_lshl_b32 s{sA}, s{sRB}, 2")
        a(f"s_add_u32 s{sA}, s{sA}, s{sCW}")
        a(f"s_mul_i32 s{sXROW}, s{sA}, {32*1280}")
        a(f"s_lshl_b32 s{sXK}, s{sROT}, 7")
        a(f"s_add_u32 s{sXK}, s{sXK}, s{sXROW}")
        a(f"s_lshl_b32 s{sSLOT}, s{sCW}, 12")
        a(f"s_mul_i32 s{sB}, s{sCW}, {NP*1024 - 4096}")
        a(f"s_add_u32 s{sB}, s{sB}, 16384")
        a(f"s_mul_i32 s{sWROW}, s{sCW}, {16*3840}")
        a(f"s_mul_i32 s{sA}, s{sG}, 160")
        a(f"s_add_u32 s{sWROW}, s{sWROW}, s{sA}")
        if kv: a(f"s_add_u32 s{sWROW}, s{sWROW}, 1280")
        a(f"s_mul_i32 s{sWK}, s{sROT}, {64*3840}")
        a(f"s_add_u32 s{sWK}, s{sWK}, s{sWROW}")
        a(f"s_mov_b32 s{sKI}, s{sROT}")
        def issue_x():
            a(f"s_mov_b32 m0, s{sSLOT}")
            a("s_nop 0")
            for i in range(4):
                a(f"buffer_load_dwordx4 v{vX+i}, {sr(sX)}, s{sXK} offen offset:{1024*i} lds")
        def issue_w():
            a(f"s_add_u32 m0, s{sSLOT}, s{sB}")
            a("s_nop 0")
            for i in range(min(NP, 4)):
                a(f"buffer_load_dwordx4 v{vW+i}, {sr(sW)}, s{sWK} offen offset:{1024*i} lds")
            if NP == 5:
                a("s_add_u32 m0, m0, 4096")
                a("s_nop 0")
                a(f"buffer_load_dwordx4 v{vW+4}, {sr(sW)}, s{sWK} offen lds")
        def advance():
            a(f"s_add_u32 s{sKI}, s{sKI}, 1")
            a(f"s_add_u32 s{sXK}, s{sXK}, 128")
            a(f"s_add_u32 s{sWK}, s{sWK}, {64*3840}")
            a(f"s_cmp_eq_u32 s{sKI}, 10")
            a(f"s_cselect_b32 s{sKI}, 0, s{sKI}")
            a(f"s_cselect_b32 s{sXK}, s{sXROW}, s{sXK}")
            a(f"s_cselect_b32 s{sWK}, s{sWROW}, s{sWK}")
            a(f"s_add_u32 s{sSLOT}, s{sSLOT}, {SLOT}")
            a(f"s_cmp_ge_u32 s{sSLOT}, {4*SLOT}")
            a(f"s_cselect_b32 s{sA}, {4*SLOT}, 0")
            a(f"s_sub_u32 s{sSLOT}, s{sSLOT}, s{sA}")
        issue_x()
        mul = (65536 + CPR - 1) // CPR
        for q in range(64 * NP): assert (q * mul) >> 16 == q // CPR
        for i in range(NP):
            comp = 1024 * i if i < 4 else 0
            a(f"v_add_u32 v2, {64*i}, v1")
            a(f"v_mul_u32_u24 v3, {mul}, v2")
            a("v_lshrrev_b32 v3, 16, v3")
            a(f"v_mul_u32_u24 v13, {CPR}, v3")
            a("v_sub_u32 v2, v2, v13")
            a("v_mul_u32_u24 v3, 3840, v3")
            a("v_cmp_lt_u32 vcc, 9, v2")
            a("v_lshl_add_u32 v3, v2, 4, v3")
            a(f"v_mov_b32 v13, {1120 if kv else 0x40000000}")
            a("v_cndmask_b32 v13, 0, v13, vcc")
            if comp: a(f"v_subrev_u32 v3, {comp}, v3")
            a(f"v_add_u32 v{vW+i}, v3, v13")
        issue_w(); advance()
        self.st(1)
        issue_x(); issue_w(); advance()
        issue_x(); issue_w(); advance()
        a(f"s_mov_b32 s{sIT}, 0")
        L = f"L_LD_{tag}"
        self.align8()
        a(f"{L}:")
        a(f"s_waitcnt vmcnt({2*per})")
        a("s_barrier")
        if not kv:
            S = a.label("NOSIG")
            a(f"s_cmp_eq_u32 s{sIT}, 1")
            a(f"s_cbranch_scc0 {S}")
            a(f"s_cmp_eq_u32 s{sWAVE}, 4")
            a(f"s_cbranch_scc0 {S}")
            self.signal(sDBG, f"s{sSIG}")
            a(f"{S}:")
        issue_x(); issue_w(); advance()
        a(f"s_add_u32 s{sIT}, s{sIT}, 1")
        a(f"s_cmp_lt_u32 s{sIT}, 7")
        a(f"s_cbranch_scc1 {L}")
        a("v_mov_b32 v2, 0")
        a(f"buffer_load_dword v14, v2, {sr(sDBG)}, 0 offen sc1")
        a(f"s_waitcnt vmcnt({2*per})")
        a("s_barrier")
        a(f"s_waitcnt vmcnt({per})")
        a("s_barrier")
        a("s_waitcnt vmcnt(0)")
        a("s_barrier")
        OK = a.label("INITOK")
        a(f"v_readfirstlane_b32 s{sT5}, v14")
        a("s_nop 0")
        a(f"s_cmp_ge_u32 s{sT5}, {NINIT}")
        a(f"s_cbranch_scc1 {OK}")
        self.poll(sDBG, 0, NINIT, "init")
        a(f"{OK}:")

    def wphi_issue(self):
        a = self.a
        a(f"s_lshl_b32 s{sA}, s{sG}, 2")
        a(f"s_add_u32 s{sA}, s{sA}, s{sCW}")
        a(f"s_mul_i32 s{sA}, s{sA}, 800")
        a("v_lshlrev_b32 v2, 3, v1")
        a("v_add_u32 v3, 512, v2")
        a("v_cmp_gt_u32 vcc, 36, v1")
        a("v_mov_b32 v9, 0x40000000")
        a(f"buffer_load_dwordx2 v[100:101], v2, {sr(sPHI)}, s{sA} offen")
        a("v_cndmask_b32 v3, v9, v3, vcc")
        a(f"buffer_load_dwordx2 v[104:105], v3, {sr(sPHI)}, s{sA} offen")
    def wphi_write(self):
        a = self.a
        a(f"s_mul_i32 s{sA}, s{sCW}, 1600")
        a(f"s_lshr_b32 s{sB}, s{sCW}, 1")
        a(f"s_mul_i32 s{sB}, s{sB}, 1280")
        a(f"s_add_u32 s{sA}, s{sA}, s{sB}")
        a(f"s_add_u32 s{sA}, s{sA}, {WPHI}")
        a(f"v_lshl_add_u32 v2, v1, 4, s{sA}")
        a(f"s_and_b32 s{sB}, s{sCW}, 1")
        a(f"s_cmp_eq_u32 s{sB}, 0")
        a(f"s_cselect_b32 s{sB}, -1, 0")
        a(f"s_not_b32 s{sC}, s{sB}")
        a("s_waitcnt vmcnt(0)")
        for b in (100, 104):
            a(f"v_and_b32 v{b+2}, s{sC}, v{b}")
            a(f"v_and_b32 v{b+3}, s{sC}, v{b+1}")
            a(f"v_and_b32 v{b}, s{sB}, v{b}")
            a(f"v_and_b32 v{b+1}, s{sB}, v{b+1}")
        a("ds_write_b128 v2, v[100:103]")
        a("v_cmp_gt_u32 vcc, 36, v1")
        a(f"s_and_saveexec_b64 s[{sEX}:{sEX+1}], vcc")
        a("ds_write_b128 v2, v[104:107] offset:1024")
        a("s_mov_b64 exec, 0xfffff")
        a(f"s_mul_i32 s{sA}, s{sCW}, 320")
        a(f"s_add_u32 s{sA}, s{sA}, {WPHI+3200}")
        a(f"v_lshl_add_u32 v2, v1, 4, s{sA}")
        for r in range(108, 112): a(f"v_mov_b32 v{r}, 0")
        a("ds_write_b128 v2, v[108:111]")
        a(f"s_mov_b64 exec, s[{sEX}:{sEX+1}]")

    def compute(self, kv, tag):
        a = self.a
        NT = 5 if kv else 3
        RSW = 320 if kv else 192
        SLOT = 16384 + (5 if kv else 3) * 4096
        ACCR = 16
        FX = [96, 120]; FA = [100, 124]
        vXA, vWA = 4, 8
        self.wphi_issue()
        a("v_and_b32 v2, 31, v1")
        a("v_bfe_u32 v3, v1, 1, 3")
        a("v_lshrrev_b32 v9, 5, v1")
        a("v_xor_b32 v3, v3, v9")
        a(f"s_lshl_b32 s{sA}, s{sCW}, 12")
        a("v_lshlrev_b32 v2, 7, v2")
        a("v_lshl_add_u32 v2, v3, 4, v2")
        a(f"v_add_u32 v{vXA}, s{sA}, v2")
        for k in range(1, 4): a(f"v_xor_b32 v{vXA+k}, {32*k}, v{vXA}")
        self.trlane(10, 11, 12, 9)
        a("v_lshl_add_u32 v11, v9, 3, v11")
        a(f"v_mul_u32_u24 v11, {RSW}, v11")
        a("v_lshl_add_u32 v11, v10, 5, v11")
        a("v_lshl_add_u32 v11, v12, 3, v11")
        a(f"v_add_u32 v{vWA}, 16384, v11")
        for r in range(ACCR, ACCR + 16 * NT): a(f"v_mov_b32 v{r}, 0")
        self.wphi_write()
        for r in range(FX[1], FX[1] + 4 + 4 * NT): a(f"v_mov_b32 v{r}, 0")
        a(f"s_mov_b32 s{sIT}, 0")
        a(f"s_mov_b32 s{sSLOT}, 0")
        a("s_waitcnt lgkmcnt(0)")
        def reads(buf, ks):
            out = [f"ds_read_b128 {vr(FX[buf],4)}, v{vXA+ks}"]
            for t in range(NT):
                for j in range(2):
                    out.append(f"ds_read_b64_tr_b16 {vr(FA[buf]+4*t+2*j,2)}, v{vWA} offset:{(16*ks+4*j)*RSW+64*t}")
            return out
        def step(mb, rb, ks, waited):
            rd = reads(rb, ks) if rb is not None else []
            plan = [3, 3, 3, 2, 0] if NT == 5 else [3, 2, 2]
            older = 1 + 2 * NT; new = 0; pos = 0
            for t in range(NT):
                if not waited:
                    left = older - (1 + 2 * (t + 1))
                    a(f"s_waitcnt lgkmcnt({left + new})")
                a(f"v_mfma_f32_32x32x16_bf16 {vr(ACCR+16*t,16)}, {vr(FA[mb]+4*t,4)}, {vr(FX[mb],4)}, {vr(ACCR+16*t,16)}")
                for k in range(plan[t]):
                    if pos < len(rd): a(rd[pos]); pos += 1; new += 1
        L = f"L_CP_{tag}"
        self.align8()
        a(f"{L}:")
        a("s_barrier")
        if self.stamps:
            S = a.label("NOST")
            a(f"s_cmp_eq_u32 s{sIT}, 0")
            a(f"s_cbranch_scc0 {S}")
            self.st(1)
            a(f"{S}:")
            self.align8()
        step(1, 0, 0, True)
        step(0, 1, 1, False)
        step(1, 0, 2, False)
        step(0, 1, 3, False)
        a(f"s_add_u32 s{sSLOT}, s{sSLOT}, 1")
        a(f"s_and_b32 s{sSLOT}, s{sSLOT}, 3")
        a(f"s_cmp_eq_u32 s{sSLOT}, 0")
        a(f"s_cselect_b32 s{sA}, {(-3*SLOT) & 0xffffffff}, {0}")
        a(f"s_cselect_b32 s{sB}, 0, {SLOT}")
        a(f"s_add_u32 s{sA}, s{sA}, s{sB}")
        for k in range(5): a(f"v_add_u32 v{vXA+k}, s{sA}, v{vXA+k}")
        a(f"s_add_u32 s{sIT}, s{sIT}, 1")
        a(f"s_cmp_lt_u32 s{sIT}, 10")
        if kv: a("s_waitcnt lgkmcnt(0)")
        else: a("s_waitcnt vmcnt(0) lgkmcnt(0)")
        a(f"s_cbranch_scc1 {L}")
        step(1, None, 0, True)
        self.st(2)
        a("s_nop 7")
        a("s_nop 1")
        KB = 144
        for s in range(5):
            if s == 4: a("s_nop 7")
            base = ACCR + 16 * (s >> 1) + 8 * (s & 1)
            for q in range(4):
                a(f"v_cvt_pk_bf16_f32 v{KB+4*s+q}, v{base+2*q}, v{base+2*q+1}")
        a(f"s_mul_i32 s{sA}, s{sCW}, 3072")
        a(f"v_lshl_add_u32 v2, v1, 4, s{sA}")
        for s in range(3):
            a(f"ds_write_b128 v2, {vr(KB+8+4*s,4)} offset:{HAND+1024*s}")
        if kv:
            a("v_and_b32 v2, 31, v1")
            a(f"s_lshl_b32 s{sA}, s{sCW}, 5")
            a(f"v_add_u32 v2, s{sA}, v2")
            a(f"v_mul_u32_u24 v2, {VS}, v2")
            a("v_lshrrev_b32 v3, 5, v1")
            a("v_lshl_add_u32 v3, v3, 3, v2")
            a("s_nop 3")
            for vq in range(10):
                base = ACCR + 32 + 8 + 4 * vq
                t = 164 + 2 * vq
                a(f"v_cvt_pk_bf16_f32 v{t}, v{base}, v{base+1}")
                a(f"v_cvt_pk_bf16_f32 v{t+1}, v{base+2}, v{base+3}")
                a(f"ds_write_b64 v3, {vr(t,2)} offset:{VIMG+16*vq}")
            a("v_mov_b32 v184, 0x3f80")
            a("v_mov_b32 v185, 0")
            a(f"ds_write_b64 v2, v[184:185] offset:{VIMG+160}")
        a("s_waitcnt lgkmcnt(0)")

    def phi(self):
        a = self.a
        KB = 144
        A1, A2, P1, P2 = 116, 128, 164, 180
        a("s_barrier")
        H = a.label("NOHAND")
        a(f"s_cmp_eq_u32 s{sP}, 0")
        a(f"s_cbranch_scc1 {H}")
        a(f"s_mul_i32 s{sA}, s{sCW}, 3072")
        a(f"v_lshl_add_u32 v2, v1, 4, s{sA}")
        for s in range(3):
            a(f"ds_read_b128 {vr(KB+4*s,4)}, v2 offset:{HAND+1024*s}")
        a(f"{H}:")
        self.trlane(10, 11, 12, 9)
        a("v_lshl_add_u32 v11, v9, 2, v11")
        a("v_mul_u32_u24 v11, 80, v11")
        a("v_lshl_add_u32 v11, v10, 5, v11")
        a("v_lshl_add_u32 v11, v12, 3, v11")
        a(f"s_mul_i32 s{sA}, s{sP}, 3840")
        a(f"s_add_u32 s{sA}, s{sA}, {WPHI}")
        a(f"v_add_u32 v11, s{sA}, v11")
        for s in range(3):
            for j in range(2):
                a(f"ds_read_b64_tr_b16 {vr(A1+4*s+2*j,2)}, v11 offset:{(16*s+8*j)*80}")
        for s in range(3):
            for j in range(2):
                a(f"ds_read_b64_tr_b16 {vr(A2+4*s+2*j,2)}, v11 offset:{(16*s+8*j)*80+64}")
        a("s_waitcnt lgkmcnt(6)")
        for s in range(3):
            a(f"v_mfma_f32_32x32x16_bf16 {vr(P1,16)}, {vr(A1+4*s,4)}, {vr(KB+4*s,4)}, {'0' if s == 0 else vr(P1,16)}")
        a("s_waitcnt lgkmcnt(0)")
        for s in range(3):
            a(f"v_mfma_f32_32x32x16_bf16 {vr(P2,16)}, {vr(A2+4*s,4)}, {vr(KB+4*s,4)}, {'0' if s == 0 else vr(P2,16)}")
        a("s_nop 7")
        a("s_nop 0")
        p = [P1 + i for i in range(20)]
        assert P2 == P1 + 16
        MX, MN = 236, 237
        a(f"v_max3_f32 v{MX}, v{p[0]}, v{p[1]}, v{p[2]}")
        a(f"v_min3_f32 v{MN}, v{p[0]}, v{p[1]}, v{p[2]}")
        for i in range(3, 15, 2):
            a(f"v_max3_f32 v{MX}, v{MX}, v{p[i]}, v{p[i+1]}")
            a(f"v_min3_f32 v{MN}, v{MN}, v{p[i]}, v{p[i+1]}")
        for i in (15, 17):
            a(f"v_max3_f32 v{MX}, v{MX}, v{p[i]}, v{p[i+1]}")
            a(f"v_min3_f32 v{MN}, v{MN}, v{p[i]}, v{p[i+1]}")
        a(f"v_max_f32 v{MX}, v{MX}, v{p[19]}")
        a(f"v_min_f32 v{MN}, v{MN}, v{p[19]}")
        a(f"s_mov_b32 s{sA}, {f32(math.log2(math.e))}")
        a(f"v_mul_f32 v{MX}, s{sA}, v{MX}")
        a(f"v_mul_f32 v{MN}, s{sA}, v{MN}")
        EP, EM = 96, 196
        for i in range(20):
            a(f"v_fma_f32 v{EP+i}, v{p[i]}, s{sA}, -v{MX}")
            a(f"v_fma_f32 v{EM+i}, -v{p[i]}, s{sA}, v{MN}")
        for i in range(20):
            a(f"v_exp_f32 v{EP+i}, v{EP+i}")
            a(f"v_exp_f32 v{EM+i}, v{EM+i}")
        S0, S1, S2, S3 = 238, 239, 240, 241
        a(f"v_add_f32 v{S0}, v{EP}, v{EP+1}")
        a(f"v_add_f32 v{S1}, v{EM}, v{EM+1}")
        a(f"v_add_f32 v{S2}, v{EP+2}, v{EP+3}")
        a(f"v_add_f32 v{S3}, v{EM+2}, v{EM+3}")
        for i in range(4, 20, 2):
            a(f"v_add_f32 v{S0}, v{S0}, v{EP+i}")
            a(f"v_add_f32 v{S1}, v{S1}, v{EM+i}")
            a(f"v_add_f32 v{S2}, v{S2}, v{EP+i+1}")
            a(f"v_add_f32 v{S3}, v{S3}, v{EM+i+1}")
        a(f"v_add_f32 v{S0}, v{S0}, v{S2}")
        a(f"v_add_f32 v{S1}, v{S1}, v{S3}")
        a(f"v_rcp_f32 v{S0}, v{S0}")
        a(f"v_rcp_f32 v{S1}, v{S1}")
        a("s_nop 0")
        PF = 216
        for i in range(0, 20, 2):
            a(f"v_mul_f32 v{EP+i}, v{S0}, v{EP+i}")
            a(f"v_mul_f32 v{EP+i+1}, v{S0}, v{EP+i+1}")
            a(f"v_mul_f32 v{EM+i}, v{S1}, v{EM+i}")
            a(f"v_mul_f32 v{EM+i+1}, v{S1}, v{EM+i+1}")
            a(f"v_cvt_pk_bf16_f32 v{PF+i//2}, v{EP+i}, v{EP+i+1}")
            a(f"v_cvt_pk_bf16_f32 v{PF+10+i//2}, v{EM+i}, v{EM+i+1}")

    def kvpart(self):
        a = self.a
        PF = 216
        a("v_and_b32 v2, 31, v1")
        a(f"s_lshl_b32 s{sA}, s{sCW}, 5")
        a(f"v_add_u32 v2, s{sA}, v2")
        a(f"v_mul_u32_u24 v2, {PS}, v2")
        a("v_lshrrev_b32 v3, 5, v1")
        a("v_mul_u32_u24 v3, 80, v3")
        a(f"s_mul_i32 s{sA}, s{sP}, 160")
        a(f"s_add_u32 s{sA}, s{sA}, {PHIMG}")
        a(f"v_add3_u32 v2, v2, v3, s{sA}")
        for c in range(5):
            a(f"ds_write_b128 v2, {vr(PF+4*c,4)} offset:{16*c}")
        self.trlane(10, 11, 12, 9)
        a("v_lshl_add_u32 v11, v9, 3, v11")
        a("v_lshl_add_u32 v13, v10, 2, v12")
        a(f"s_mul_i32 s{sA}, s{sCW}, 40")
        a(f"v_lshl_add_u32 v14, v13, 3, s{sA}")
        a("v_mov_b32 v15, 160")
        a("v_cmp_gt_u32 vcc, 5, v13")
        a(f"v_mul_u32_u24 v4, {VS}, v11")
        a(f"v_mul_u32_u24 v5, {PS}, v11")
        a("v_cndmask_b32 v14, v15, v14, vcc")
        a("v_add_u32 v4, v4, v14")
        a(f"s_mul_i32 s{sA}, s{sCW}, 80")
        a(f"s_lshl_b32 s{sB}, s{sP}, 6")
        a(f"s_add_u32 s{sA}, s{sA}, s{sB}")
        a(f"s_add_u32 s{sA}, s{sA}, {PHIMG}")
        a(f"v_lshl_add_u32 v5, v13, 3, v5")
        a(f"v_add_u32 v5, s{sA}, v5")
        a("v_and_b32 v2, 31, v1")
        a("v_lshlrev_b32 v6, 2, v2")
        a("v_mul_u32_u24 v3, 768, v9")
        a("v_add_u32 v6, v6, v3")
        a(f"s_cmp_eq_u32 s{sP}, 0")
        a(f"s_cselect_b32 s{sA}, 32, 8")
        a("v_mov_b32 v15, 0x40000000")
        a(f"v_cmp_gt_u32 vcc, s{sA}, v2")
        a(f"s_lshl_b32 s{sB}, s{sG}, 2")
        a(f"s_add_u32 s{sB}, s{sB}, s{sCW}")
        a("v_cndmask_b32 v6, v15, v6, vcc")
        a("v_cmp_gt_u32 vcc, 32, v1")
        a(f"s_mul_i32 s{sB}, s{sB}, 4032")
        a(f"s_lshl_b32 s{sA}, s{sP}, 7")
        a("v_cndmask_b32 v7, v15, v6, vcc")
        a(f"s_add_u32 s{sB}, s{sB}, s{sA}")
        if ACC: a(f"s_add_u32 s{sB}, s{sB}, {ACC}")
        a("s_waitcnt lgkmcnt(0)")
        a("s_barrier")
        FA, FB, D = 16, 48, 80
        def rd(ks):
            for j in range(2):
                a(f"ds_read_b64_tr_b16 {vr(FA+4*ks+2*j,2)}, v4 offset:{VIMG+(16*ks+4*j)*VS}")
            for j in range(2):
                a(f"ds_read_b64_tr_b16 {vr(FB+4*ks+2*j,2)}, v5 offset:{(16*ks+4*j)*PS}")
        for ks in range(3): rd(ks)
        for ks in range(8):
            left = min(2, 7 - ks) * 4
            a(f"s_waitcnt lgkmcnt({left})")
            a(f"v_mfma_f32_32x32x16_bf16 {vr(D,16)}, {vr(FA+4*ks,4)}, {vr(FB+4*ks,4)}, {'0' if ks == 0 else vr(D,16)}")
            if ks + 3 < 8: rd(ks + 3)
        a("s_nop 7")
        a("s_nop 3")
        for j in range(3):
            for i in range(4):
                v = 6 if (j < 2 or i == 0) else 7
                a(f"buffer_atomic_add_f32 v{D+4*j+i}, v{v}, {sr(sWS)}, s{sB} offen offset:{(8*j+i)*192}")
        self.st(4)
        a("s_waitcnt vmcnt(0)")
        a("s_barrier")
        self.st(5)
        S = a.label("NOKVSIG")
        a(f"s_cmp_eq_u32 s{sWAVE}, 0")
        a(f"s_cbranch_scc0 {S}")
        a(f"s_lshl_b32 s{sA}, s{sG}, 8")
        a(f"s_add_u32 s{sA}, s{sA}, {KVC}")
        self.signal(sWS, f"s{sA}")
        a(f"{S}:")

    def wo_dma(self):
        a = self.a
        V = 244
        mul = (65536 + 9) // 10
        for q in range(320): assert (q * mul) >> 16 == q // 10
        for i in range(5):
            comp = 1024 * i if i < 4 else 0
            a(f"v_add_u32 v2, {64*i}, v1")
            a(f"v_mul_u32_u24 v3, {mul}, v2")
            a("v_lshrrev_b32 v3, 16, v3")
            a("v_mul_u32_u24 v13, 10, v3")
            a("v_sub_u32 v2, v2, v13")
            a("v_mul_u32_u24 v3, 1280, v3")
            a(f"v_lshl_add_u32 v{V+i}, v2, 4, v3")
            if comp: a(f"v_subrev_u32 v{V+i}, {comp}, v{V+i}")
        a(f"s_lshr_b32 s{sA}, s{sJ}, 2")
        a(f"s_mul_i32 s{sA}, s{sA}, 160")
        a(f"s_mul_i32 s{sB}, s{sWAVE}, {32*1280}")
        a(f"s_add_u32 s{sA}, s{sA}, s{sB}")
        a(f"s_mul_i32 s{sB}, s{sWAVE}, 5120")
        a(f"s_add_u32 s{sB}, s{sB}, {WOIMG}")
        E = a.label("WOEND")
        for rep in range(3):
            if rep == 2:
                a(f"s_cmp_ge_u32 s{sWAVE}, 4")
                a(f"s_cbranch_scc1 {E}")
            a(f"s_mov_b32 m0, s{sB}")
            a("s_nop 0")
            for i in range(4):
                a(f"buffer_load_dwordx4 v{V+i}, {sr(sWO)}, s{sA} offen offset:{1024*i} lds")
            a("s_add_u32 m0, m0, 4096")
            a("s_nop 0")
            a(f"buffer_load_dwordx4 v{V+4}, {sr(sWO)}, s{sA} offen lds")
            if rep < 2:
                a(f"s_add_u32 s{sA}, s{sA}, {8*32*1280}")
                a(f"s_add_u32 s{sB}, s{sB}, {8*5120}")
        a(f"{E}:")

    def ostep(self):
        a = self.a
        PF = 216
        a("v_mov_b32 v4, 0"); a("v_mov_b32 v5, 0")
        a("v_lshlrev_b32 v2, 3, v1")
        a("s_mov_b64 exec, 0xffff")
        a(f"v_add_u32 v2, {KVZERO}, v2")
        a("ds_write_b64 v2, v[4:5]")
        a("s_mov_b64 exec, -1")
        mul = (65536 + 9) // 10
        for q in range(840): assert (q * mul) >> 16 == q // 10
        for i in range(2):
            a(f"v_add_u32 v2, {512*i}, v0")
            a(f"v_mul_u32_u24 v3, {mul}, v2")
            a("v_lshrrev_b32 v3, 16, v3")
            a("v_mul_u32_u24 v3, 32, v3")
            a(f"v_lshl_add_u32 v{6+i}, v2, 4, v3")
        a("v_cmp_gt_u32 vcc, 328, v0")
        a("v_mov_b32 v15, 0x40000000")
        a("v_lshlrev_b32 v8, 3, v0")
        a("v_cndmask_b32 v7, v15, v7, vcc")
        a(f"v_add_u32 v8, {KVIMG}, v8")
        a("v_bfe_u32 v9, v1, 2, 1")
        a("v_bfe_u32 v10, v1, 3, 2")
        a("v_and_b32 v11, 3, v1")
        a("v_lshl_add_u32 v10, v10, 2, v11")
        a("v_add_u32 v11, 16, v10")
        a("v_min_u32 v11, 20, v11")
        a("v_mul_u32_u24 v12, 21, v9")
        a(f"s_mul_i32 s{sA}, s{sP}, 42")
        a(f"v_add_u32 v12, s{sA}, v12")
        a("v_add_u32 v10, v10, v12")
        a("v_add_u32 v11, v11, v12")
        a("v_mul_u32_u24 v10, 80, v10")
        a("v_mul_u32_u24 v11, 80, v11")
        a("v_lshrrev_b32 v12, 5, v1")
        a("v_cmp_eq_u32 vcc, v12, v9")
        a("v_mov_b32 v13, 6720")
        a(f"s_mul_i32 s{sB}, s{sG}, {4*4032}")
        a("v_cndmask_b32 v10, v13, v10, vcc")
        a("v_cndmask_b32 v11, v13, v11, vcc")
        a(f"v_add_u32 v10, {KVIMG}, v10")
        a(f"v_add_u32 v11, {KVIMG}, v11")
        if ACC: a(f"s_add_u32 s{sB}, s{sB}, {ACC}")
        a(f"s_lshl_b32 s{sC}, s{sRB}, 2")
        a(f"s_add_u32 s{sC}, s{sC}, s{sCW}")
        a(f"s_lshl_b32 s{sC}, s{sC}, 3")
        a(f"s_add_u32 s{sC}, s{sC}, s{sG}")
        a(f"s_mul_i32 s{sC}, s{sC}, 5120")
        a(f"s_add_u32 s{sC}, s{sC}, {OB}")
        a(f"s_lshl_b32 s{sD}, s{sP}, 9")
        a(f"s_add_u32 s{sD}, s{sD}, s{sC}")
        a(f"s_add_u32 s{sD}, s{sD}, 4096")
        a(f"s_lshl_b32 s{sE}, s{sP}, 11")
        a(f"s_add_u32 s{sC}, s{sC}, s{sE}")
        a("v_lshlrev_b32 v12, 4, v1")
        a("v_lshlrev_b32 v13, 3, v1")
        S = a.label("NOKVPOLL")
        a(f"s_cmp_eq_u32 s{sWAVE}, 0")
        a(f"s_cbranch_scc0 {S}")
        a(f"s_lshl_b32 s{sA}, s{sG}, 8")
        a(f"s_add_u32 s{sA}, s{sA}, {KVC}")
        self.poll(sWS, f"s{sA}", 16, "kv")
        a(f"{S}:")
        a("s_barrier")
        self.st(5)
        a(f"buffer_load_dwordx4 v[16:19], v6, {sr(sWS)}, s{sB} offen sc1")
        a(f"buffer_load_dwordx4 v[20:23], v7, {sr(sWS)}, s{sB} offen sc1")
        a("s_waitcnt vmcnt(1)")
        a("v_cvt_pk_bf16_f32 v16, v16, v17")
        a("v_cvt_pk_bf16_f32 v17, v18, v19")
        a("ds_write_b64 v8, v[16:17]")
        a("s_waitcnt vmcnt(0)")
        a("v_cvt_pk_bf16_f32 v20, v20, v21")
        a("v_cvt_pk_bf16_f32 v21, v22, v23")
        a("v_cmp_gt_u32 vcc, 328, v0")
        a(f"s_and_saveexec_b64 s[{sEX}:{sEX+1}], vcc")
        a("ds_write_b64 v8, v[20:21] offset:4096")
        a(f"s_mov_b64 exec, s[{sEX}:{sEX+1}]")
        a("s_waitcnt lgkmcnt(0)")
        a("s_barrier")
        FA, FB, TA, TB = 24, 44, 64, 80
        for kk in range(5): a(f"ds_read_b128 {vr(FB+4*kk,4)}, v11 offset:{16*kk}")
        for kk in range(5): a(f"ds_read_b128 {vr(FA+4*kk,4)}, v10 offset:{16*kk}")
        for kk in range(5):
            a(f"s_waitcnt lgkmcnt({9-kk})")
            a(f"v_mfma_f32_32x32x16_bf16 {vr(TB,16)}, {vr(FB+4*kk,4)}, {vr(PF+4*kk,4)}, {'0' if kk == 0 else vr(TB,16)}")
        for kk in range(5):
            a(f"s_waitcnt lgkmcnt({4-kk})")
            a(f"v_mfma_f32_32x32x16_bf16 {vr(TA,16)}, {vr(FA+4*kk,4)}, {vr(PF+4*kk,4)}, {'0' if kk == 0 else vr(TA,16)}")
        a("s_nop 2")
        a(f"v_add_f32 v14, {f32(1e-6)}, v{TB+4}")
        a("v_rcp_f32 v14, v14")
        a("s_nop 0")
        for i in range(4): a(f"v_mul_f32 v{TB+i}, v14, v{TB+i}")
        a(f"v_cvt_pk_bf16_f32 v104, v{TB}, v{TB+1}")
        a(f"v_cvt_pk_bf16_f32 v105, v{TB+2}, v{TB+3}")
        a(f"buffer_store_dwordx2 v[104:105], v13, {sr(sWS)}, s{sD} offen sc1")
        a("s_nop 0")
        for b in range(2):
            for i in range(8): a(f"v_mul_f32 v{TA+8*b+i}, v14, v{TA+8*b+i}")
            for i in range(4): a(f"v_cvt_pk_bf16_f32 v{96+4*b+i}, v{TA+8*b+2*i}, v{TA+8*b+2*i+1}")
            a(f"buffer_store_dwordx4 {vr(96+4*b,4)}, v12, {sr(sWS)}, s{sC} offen offset:{1024*b} sc1")
        self.st(6)
        a("s_waitcnt vmcnt(0)")
        a("s_barrier")
        S = a.label("NOOSIG")
        a(f"s_cmp_eq_u32 s{sWAVE}, 0")
        a(f"s_cbranch_scc0 {S}")
        a(f"s_lshl_b32 s{sA}, s{sRB}, 8")
        a(f"s_add_u32 s{sA}, s{sA}, {OC}")
        self.signal(sWS, f"s{sA}")
        a(f"{S}:")

    def final(self):
        a = self.a
        a("v_lshrrev_b32 v2, 5, v1")
        a("v_bfe_u32 v3, v1, 4, 1")
        a("v_and_b32 v9, 15, v1")
        a("v_lshlrev_b32 v4, 10, v2")
        a("v_lshl_add_u32 v4, v3, 9, v4")
        a("v_lshl_add_u32 v4, v9, 4, v4")
        a("v_mul_u32_u24 v5, 5120, v2")
        a("v_lshl_add_u32 v5, v3, 8, v5")
        a("v_lshl_add_u32 v5, v9, 3, v5")
        a("v_bfe_u32 v10, v1, 2, 2")
        a("v_and_b32 v11, 3, v1")
        a("v_mul_u32_u24 v12, 20, v3")
        a("v_add_u32 v12, v12, v10")
        a("v_lshl_add_u32 v6, v2, 3, v12")
        a("v_mul_u32_u24 v6, 160, v6")
        a("v_lshl_add_u32 v6, v11, 3, v6")
        a("v_mul_u32_u24 v7, 80, v2")
        a("v_add3_u32 v7, v7, v12, 16")
        a("v_mul_u32_u24 v7, 160, v7")
        a("v_lshl_add_u32 v7, v11, 3, v7")
        a(f"s_mul_i32 s{sA}, s{sP}, 51200")
        a(f"s_add_u32 s{sA}, s{sA}, {WOIMG}")
        a(f"v_add_u32 v6, s{sA}, v6")
        a(f"v_add_u32 v7, s{sA}, v7")
        a(f"s_and_b32 s{sA}, s{sJ}, 3")
        a(f"s_lshl_b32 s{sB}, s{sXCD}, 2")
        a(f"s_add_u32 s{sA}, s{sA}, s{sB}")
        a(f"s_lshr_b32 s{sF}, s{sA}, 1")
        a(f"s_lshl_b32 s{sB}, s{sA}, 1")
        a(f"s_lshr_b32 s{sC}, s{sCW}, 1")
        a(f"s_add_u32 s{sB}, s{sB}, s{sC}")
        a(f"s_lshl_b32 s{sB}, s{sB}, 1")
        a(f"s_add_u32 s{sB}, s{sB}, s{sP}")
        a(f"s_mul_i32 s{sB}, s{sB}, {4*5120}")
        a(f"s_add_u32 s{sB}, s{sB}, {OB}")
        a(f"s_and_b32 s{sC}, s{sCW}, 1")
        a(f"s_lshl_b32 s{sD}, s{sC}, 7")
        a(f"s_add_u32 s{sD}, s{sD}, s{sB}")
        a(f"s_add_u32 s{sD}, s{sD}, 4096")
        a(f"s_lshl_b32 s{sC}, s{sC}, 8")
        a(f"s_add_u32 s{sB}, s{sB}, s{sC}")
        a(f"s_lshl_b32 s{sA}, s{sA}, 2")
        a(f"s_add_u32 s{sA}, s{sA}, s{sCW}")
        a(f"s_mul_i32 s{sA}, s{sA}, {16*2560}")
        a(f"s_lshr_b32 s{sC}, s{sJ}, 2")
        a(f"s_mul_i32 s{sC}, s{sC}, 160")
        a(f"s_add_u32 s{sE}, s{sA}, s{sC}")
        a("v_mul_u32_u24 v8, 2560, v9")
        a("v_lshrrev_b32 v2, 4, v1")
        a("v_lshl_add_u32 v8, v2, 3, v8")
        a(f"s_mul_i32 s{sA}, s{sCW}, 5120")
        a(f"s_add_u32 s{sA}, s{sA}, {RED}")
        a(f"v_lshl_add_u32 v14, v1, 4, s{sA}")
        S = a.label("NOOPOLL")
        a(f"s_cmp_eq_u32 s{sWAVE}, 0")
        a(f"s_cbranch_scc0 {S}")
        a(f"s_lshl_b32 s{sA}, s{sF}, 8")
        a(f"s_add_u32 s{sA}, s{sA}, {OC}")
        self.poll(sWS, f"s{sA}", 8, "o")
        a(f"{S}:")
        a("s_waitcnt vmcnt(0) lgkmcnt(0)")
        a("s_barrier")
        self.st(8)
        O, AC = 16, 56
        FR = [76, 96]
        steps = []
        n = 0
        for gl in range(4):
            if gl: a(f"s_add_u32 s{sB}, s{sB}, 5120")
            for p in range(2):
                a(f"buffer_load_dwordx4 {vr(O+4*n,4)}, v4, {sr(sWS)}, s{sB} offen offset:{2048*p} sc1")
                steps.append((O + 4 * n, 6, gl * 12800 + p * 6400, 640, 1)); n += 1
        for gp in range(2):
            if gp: a(f"s_add_u32 s{sD}, s{sD}, 10240")
            for j in range(2):
                a(f"buffer_load_dwordx2 {vr(O+4*n+2*j,2)}, v5, {sr(sWS)}, s{sD} offen offset:{512*j} sc1")
            steps.append((O + 4 * n, 7, gp * 25600, 6400, 2)); n += 1
        def rd(k):
            _, ad, off, js, _ = steps[k]
            return [f"ds_read_b64_tr_b16 {vr(FR[k&1]+4*t+2*j,2)}, v{ad} offset:{off+js*j+32*t}" for t in range(5) for j in range(2)]
        for s in rd(0): a(s)
        total = 12; done = 0
        for k in range(10):
            done += steps[k][4]
            a(f"s_waitcnt vmcnt({total-done})")
            nx = rd(k + 1) if k < 9 else []
            new = 0
            for t in range(5):
                a(f"s_waitcnt lgkmcnt({10 - 2*(t+1) + new})")
                a(f"v_mfma_f32_16x16x32_bf16 {vr(AC+4*t,4)}, {vr(FR[k&1]+4*t,4)}, {vr(steps[k][0],4)}, {'0' if k == 0 else vr(AC+4*t,4)}")
                for q in range(2):
                    if nx: a(nx.pop(0)); new += 1
        self.st(9)
        Z = a.label("FINLO")
        a(f"s_cmp_eq_u32 s{sP}, 0")
        a(f"s_cbranch_scc1 {Z}")
        a("s_nop 5")
        for t in range(5): a(f"ds_write_b128 v14, {vr(AC+4*t,4)} offset:{1024*t}")
        a("s_waitcnt lgkmcnt(0)")
        a("s_barrier")
        a("s_branch L_FINI")
        a(f"{Z}:")
        a("s_barrier")
        for t in range(5): a(f"ds_read_b128 {vr(76+4*t,4)}, v14 offset:{1024*t}")
        for t in range(5):
            a(f"s_waitcnt lgkmcnt({4-t})")
            for i in range(4): a(f"v_add_f32 v{AC+4*t+i}, v{AC+4*t+i}, v{76+4*t+i}")
            a(f"v_cvt_pk_bf16_f32 v{96+2*t}, v{AC+4*t}, v{AC+4*t+1}")
            a(f"v_cvt_pk_bf16_f32 v{97+2*t}, v{AC+4*t+2}, v{AC+4*t+3}")
            a(f"buffer_store_dwordx2 {vr(96+2*t,2)}, v8, {sr(sOUT)}, s{sE} offen offset:{32*t}")
        a("L_FINI:")

    def b1(self):
        a = self.a
        a(f"s_sub_u32 s{sA}, s2, 128")
        a(f"s_mul_i32 s{sB}, s{sA}, 205")
        a(f"s_lshr_b32 s{sB}, s{sB}, 10")
        for u in range(80): assert (u * 205) >> 10 == u // 5
        a(f"s_mul_i32 s{sC}, s{sB}, 5")
        a(f"s_sub_u32 s{sC}, s{sA}, s{sC}")
        a("v_lshrrev_b32 v2, 4, v1")
        a("v_and_b32 v3, 15, v1")
        a("v_lshlrev_b32 v9, 2, v2")
        a("v_xor_b32 v3, v3, v9")
        a(f"v_mul_u32_u24 v2, {16*1280}, v2")
        a("v_lshl_add_u32 v4, v3, 4, v2")
        for i in range(1, 4): a(f"v_add_u32 v{4+i}, {i*(81920-1024)}, v4")
        a(f"s_lshl_b32 s{sD}, s{sWAVE}, 8")
        a(f"s_add_u32 s{sD}, s{sD}, s{sB}")
        a(f"s_mul_i32 s{sD}, s{sD}, 1280")
        a(f"s_lshl_b32 s{sE}, s{sC}, 8")
        a(f"s_add_u32 s{sD}, s{sD}, s{sE}")
        a(f"s_lshl_b32 m0, s{sWAVE}, 12")
        a("s_nop 0")
        for i in range(4):
            a(f"buffer_load_dwordx4 v{4+i}, {sr(sBX)}, s{sD} offen offset:{1024*i} lds")
        AF = 16
        a("v_bfe_u32 v2, v1, 1, 4")
        a(f"s_lshl_b32 s{sD}, s{sCW}, 4")
        a(f"v_add_u32 v2, s{sD}, v2")
        a("v_and_b32 v3, 1, v1")
        a(f"v_mul_u32_u24 v9, s{sB}, v2")
        a("v_lshl_add_u32 v9, v3, 9, v9")
        a("v_lshl_add_u32 v10, v2, 1, v3")
        a("v_cmp_eq_u32 vcc, 1, v10")
        a("v_mov_b32 v11, 64")
        a("v_lshrrev_b32 v12, 5, v1")
        a("v_cndmask_b32 v2, v2, v11, vcc")
        a("v_cndmask_b32 v9, v9, 0, vcc")
        a("v_lshlrev_b32 v12, 7, v12")
        a("v_mul_u32_u24 v12, v2, v12")
        a("v_add_u32 v9, v9, v12")
        a("v_and_b32 v9, 2047, v9")
        a("v_cvt_f32_u32 v9, v9")
        a("v_cvt_f32_u32 v2, v2")
        a(f"v_mul_f32 v9, {f32(1/2048)}, v9")
        a(f"v_mul_f32 v2, {f32(1/128)}, v2")
        for ks in range(8):
            for e in range(0, 8, 2):
                for z in range(2):
                    k = 16 * ks + e + z
                    a(f"s_mov_b32 s{sD}, {f32(float(k))}")
                    a(f"v_fma_f32 v{10+z}, v2, s{sD}, v9")
                a("v_cos_f32 v12, v10")
                a("v_cos_f32 v13, v11")
                a("s_nop 0")
                a(f"v_cvt_pk_bf16_f32 v{AF+4*ks+e//2}, v12, v13")
        self.trlane(10, 11, 12, 9)
        a(f"s_lshl_b32 s{sD}, s{sP}, 1")
        a(f"v_xor_b32 v13, s{sD}, v11")
        a("v_lshl_add_u32 v11, v9, 3, v11")
        a("v_lshlrev_b32 v11, 8, v11")
        a("v_lshl_add_u32 v11, v10, 5, v11")
        a("v_lshl_add_u32 v11, v12, 3, v11")
        a("v_lshl_add_u32 v4, v13, 6, v11")
        a("v_xor_b32 v5, 64, v4")
        a("v_and_b32 v2, 31, v1")
        a("v_lshlrev_b32 v6, 2, v2")
        a("v_mul_u32_u24 v3, 81920, v9")
        a("v_add_u32 v6, v6, v3")
        a(f"s_mul_i32 s{sD}, s{sCW}, {16*40960}")
        a(f"s_lshl_b32 s{sC}, s{sC}, 2")
        a(f"s_lshl_b32 s{sE}, s{sP}, 1")
        a(f"s_add_u32 s{sC}, s{sC}, s{sE}")
        a(f"s_lshl_b32 s{sC}, s{sC}, 11")
        a(f"s_add_u32 s{sD}, s{sD}, s{sC}")
        a(f"s_lshl_b32 s{sB}, s{sB}, 7")
        a(f"s_add_u32 s{sD}, s{sD}, s{sB}")
        a(f"s_add_u32 s{sD}, s{sD}, {UB}")
        a("s_waitcnt vmcnt(0)")
        a("s_barrier")
        XF, D = 48, 112
        order = [(nb, ks) for nb in range(2) for ks in range(8)]
        def rd(k):
            nb, ks = order[k]
            for j in range(2):
                a(f"ds_read_b64_tr_b16 {vr(XF+32*nb+4*ks+2*j,2)}, v{4+nb} offset:{(16*ks+4*j)*256}")
        for k in range(6): rd(k)
        for k in range(16):
            nb, ks = order[k]
            a(f"s_waitcnt lgkmcnt({2*min(5, 15-k)})")
            a(f"v_mfma_f32_32x32x16_bf16 {vr(D+16*nb,16)}, {vr(AF+4*ks,4)}, {vr(XF+32*nb+4*ks,4)}, {'0' if ks == 0 else vr(D+16*nb,16)}")
            if k + 6 < 16: rd(k + 6)
        a("s_nop 1")
        for nb in range(2):
            if nb == 1: a("s_nop 0")
            for j in range(4):
                for ii in range(2):
                    t = 16 + 8 * nb + 2 * j + ii
                    a(f"v_cvt_pk_bf16_f32 v{t}, v{D+16*nb+4*j+2*ii}, v{D+16*nb+4*j+2*ii+1}")
                    a(f"s_add_u32 s{sE}, s{sD}, {(4*j+ii)*40960 + nb*2048}")
                    a(f"buffer_store_dword v{t}, v6, {sr(sWS)}, s{sE} offen sc1")
        a("s_barrier")

    def b2(self):
        a = self.a
        S = a.label("NOB1POLL")
        a(f"s_cmp_eq_u32 s{sWAVE}, 0")
        a(f"s_cbranch_scc0 {S}")
        a(f"s_movk_i32 s{sT2}, 128")
        self.poll(sDBG, f"s{sT2}", NB1, "b1")
        a(f"{S}:")
        a("s_barrier")
        UD = 16
        a("v_and_b32 v2, 31, v1")
        a("v_lshrrev_b32 v9, 5, v1")
        a("v_lshlrev_b32 v4, 2, v2")
        a("v_lshl_add_u32 v4, v9, 9, v4")
        a(f"s_mul_i32 s{sT2}, s{sA}, 40960")
        a(f"s_lshl_b32 s{sT3}, s{sWAVE}, 11")
        a(f"s_add_u32 s{sT2}, s{sT2}, s{sT3}")
        a(f"s_add_u32 s{sT2}, s{sT2}, {UB}")
        for tl in range(3):
            if tl == 2:
                a(f"s_cmp_lt_u32 s{sWAVE}, 4")
                a(f"s_cselect_b32 s{sT3}, {8*2048}, 0")
                a(f"s_add_u32 s{sT2}, s{sT2}, s{sT3}")
            elif tl == 1:
                a(f"s_add_u32 s{sT2}, s{sT2}, {8*2048}")
            for ks in range(2):
                for e4 in range(4):
                    a(f"buffer_load_dword v{UD+8*tl+4*ks+e4}, v4, {sr(sWS)}, s{sT2} offen offset:{1024*ks+128*e4} sc1")
        M2 = 40
        a("v_bfe_u32 v3, v1, 1, 3")
        a(f"v_add_u32 v3, s{sB}, v3")
        a(f"v_lshl_add_u32 v3, v3, 7, s{sC}")
        a("v_cvt_f32_u32 v3, v3")
        a(f"v_mul_f32 v3, {f32(1/2048)}, v3")
        a("v_and_b32 v5, 1, v1")
        a("v_cvt_f32_u32 v5, v5")
        a(f"v_mul_f32 v5, {f32(0.25)}, v5")
        a("v_lshlrev_b32 v6, 2, v9")
        a("v_cvt_f32_u32 v6, v6")
        a("v_fma_f32 v5, v3, v6, v5")
        for ks in range(2):
            for e4 in range(4):
                a(f"s_mov_b32 s{sT3}, {f32(float(8*ks+e4))}")
                a(f"v_fma_f32 v10, v3, s{sT3}, v5")
                a(f"v_subrev_f32 v11, s{sF}, v10")
                a("v_cos_f32 v10, v10")
                a("v_cos_f32 v11, v11")
                a("s_nop 0")
                a(f"v_mul_f32 v10, s{sD}, v10")
                a(f"v_mul_f32 v11, s{sE}, v11")
                a(f"v_cvt_pk_bf16_f32 v{M2+4*ks+e4}, v10, v11")
        F20 = 48
        a("v_bfe_u32 v5, v1, 2, 1")
        a("v_mul_u32_u24 v5, 10, v5")
        a("v_bfe_u32 v6, v1, 1, 1")
        a("v_add_u32 v5, v5, v6")
        a("v_bfe_u32 v6, v1, 3, 2")
        a("v_lshl_add_u32 v6, v6, 1, v5")
        a("v_add_u32 v7, 8, v5")
        a("v_cvt_f32_u32 v6, v6")
        a("v_cvt_f32_u32 v7, v7")
        a(f"v_mul_f32 v6, {f32(0.05)}, v6")
        a(f"v_mul_f32 v7, {f32(0.05)}, v7")
        a("v_and_b32 v5, 1, v1")
        a("v_cvt_f32_u32 v5, v5")
        a(f"v_mul_f32 v5, {f32(0.25)}, v5")
        a("v_cmp_eq_u32 vcc, 0, v9")
        for ks in range(3):
            for jj in range(2):
                k0 = 4 * ks + jj; k1 = k0 + 2
                def par(kc): return (4.0 * (kc % 5), 0.25 if kc >= 5 else 0.0)
                d0, c0 = par(k0); d1, c1 = par(k1)
                a(f"v_mov_b32 v12, {f32(d1)}")
                a(f"v_mov_b32 v13, {f32(d0)}")
                a("v_cndmask_b32 v12, v12, v13, vcc")
                a(f"v_mov_b32 v13, {f32(c1)}")
                a(f"v_mov_b32 v14, {f32(c0)}")
                a("v_cndmask_b32 v13, v13, v14, vcc")
                a("v_sub_f32 v13, v5, v13")
                for tl in range(2):
                    st = 6 + tl
                    a(f"v_fma_f32 v10, v{st}, v12, v13")
                    for e in range(0, 4, 2):
                        a(f"v_add_f32 v11, v10, v{st}")
                        a("v_cos_f32 v14, v10")
                        a("v_cos_f32 v15, v11")
                        if e == 0: a(f"v_add_f32 v10, v11, v{st}")
                        else: a("s_nop 0")
                        dst = F20 + 12 * tl + 4 * ks + 2 * jj + e // 2
                        a(f"v_cvt_pk_bf16_f32 v{dst}, v14, v15")
                        if k1 >= 10: a(f"v_cndmask_b32 v{dst}, 0, v{dst}, vcc")
        TW = 72
        a("v_cvt_f32_u32 v5, v2")
        a(f"v_mul_f32 v5, {f32(1/640)}, v5")
        a("v_mul_u32_u24 v6, 10, v9")
        a("v_cvt_f32_u32 v6, v6")
        a("v_mul_f32 v6, v5, v6")
        for q in range(11):
            if q < 10:
                a(f"s_mov_b32 s{sT3}, {f32(float(q))}")
                a(f"v_fma_f32 v10, v5, s{sT3}, v6")
            else:
                a(f"v_mul_f32 v10, {f32(20.0)}, v5")
            a(f"v_cos_f32 v{TW+2*q}, v10")
            a(f"v_sin_f32 v{TW+2*q+1}, v10")
        F32 = 96
        a("v_cvt_f32_u32 v5, v2")
        a(f"v_mul_f32 v5, {f32(1/32)}, v5")
        a("v_lshlrev_b32 v6, 2, v9")
        a("v_cvt_f32_u32 v6, v6")
        a("v_mul_f32 v6, v5, v6")
        for ks in range(4):
            for q in range(4):
                a(f"s_mov_b32 s{sT3}, {f32(float(8*ks+q))}")
                a(f"v_fma_f32 v10, v5, s{sT3}, v6")
                a("v_cos_f32 v11, v10")
                a("v_sin_f32 v12, v10")
                a("s_nop 0")
                a(f"v_cvt_pk_bf16_f32 v{F32+4*ks+q}, v11, v12")
        DA = 112
        a(f"v_mul_u32_u24 v5, {ZS}, v2")
        a("v_lshl_add_u32 v5, v9, 3, v5")
        a(f"s_lshl_b32 s{sT3}, s{sWAVE}, 6")
        a(f"s_add_u32 s{sT3}, s{sT3}, {ZIMG}")
        a(f"v_add_u32 v5, s{sT3}, v5")
        for tl in range(3):
            a(f"s_waitcnt vmcnt({8*(2-tl)})")
            for ks in range(2):
                a(f"v_mfma_f32_32x32x16_bf16 {vr(DA+16*tl,16)}, {vr(UD+8*tl+4*ks,4)}, {vr(M2+4*ks,4)}, {'0' if ks == 0 else vr(DA+16*tl,16)}")
        a("s_nop 6")
        a(f"s_mov_b32 s{sEX}, 0xffff")
        a(f"s_mov_b32 s{sEX+1}, 0xffff")
        a(f"s_mov_b64 exec, s[{sEX}:{sEX+1}]")
        E = a.label("ZDONE")
        for tl in range(3):
            if tl == 2:
                a(f"s_cmp_ge_u32 s{sWAVE}, 4")
                a(f"s_cbranch_scc1 {E}")
            for j in range(4):
                t = 160 + 8 * tl + 2 * j
                a(f"v_cvt_pk_bf16_f32 v{t}, v{DA+16*tl+4*j}, v{DA+16*tl+4*j+1}")
                a(f"v_cvt_pk_bf16_f32 v{t+1}, v{DA+16*tl+4*j+2}, v{DA+16*tl+4*j+3}")
                a(f"ds_write_b64 v5, {vr(t,2)} offset:{512*tl+16*j}")
        a(f"{E}:")
        a("s_mov_b64 exec, -1")
        self.trlane(10, 11, 12, 9)
        a("v_lshlrev_b32 v11, 6, v11")
        a("v_lshl_add_u32 v11, v10, 5, v11")
        a("v_lshl_add_u32 v11, v12, 3, v11")
        a(f"s_mul_i32 s{sT3}, s{sWAVE}, {2*ZS}")
        a(f"s_add_u32 s{sT3}, s{sT3}, {ZIMG}")
        a(f"v_add_u32 v11, s{sT3}, v11")
        a("v_lshl_add_u32 v6, v9, 9, v11")
        a(f"v_mul_u32_u24 v7, {512 + ZS - 1280}, v9")
        a("v_add_u32 v7, v7, v11")
        a(f"s_mul_i32 s{sT3}, s{sWAVE}, {VBW}")
        a(f"s_add_u32 s{sT3}, s{sT3}, {VB}")
        a(f"v_mul_u32_u24 v8, {10*VBS}, v9")
        a("v_lshl_add_u32 v8, v2, 2, v8")
        a(f"v_add_u32 v8, s{sT3}, v8")
        a("v_bfe_u32 v12, v1, 3, 2")
        a("v_and_b32 v13, 3, v1")
        a("v_lshl_add_u32 v12, v12, 2, v13")
        a("v_min_u32 v12, 10, v12")
        a("v_bfe_u32 v13, v1, 2, 1")
        a("v_mul_u32_u24 v13, 10, v13")
        a("v_add_u32 v12, v12, v13")
        a(f"v_mul_u32_u24 v12, {VBS}, v12")
        a("v_lshl_add_u32 v12, v9, 4, v12")
        a(f"v_add_u32 v12, s{sT3}, v12")
        a("s_waitcnt lgkmcnt(0)")
        a("s_barrier")
        ZF = 16
        pad = ZS - 1280
        a(f"ds_read_b64_tr_b16 {vr(ZF,2)}, v6")
        a(f"ds_read_b64_tr_b16 {vr(ZF+2,2)}, v6 offset:256")
        a(f"ds_read_b64_tr_b16 {vr(ZF+4,2)}, v7 offset:1024")
        a(f"ds_read_b64_tr_b16 {vr(ZF+6,2)}, v6 offset:{1280+pad}")
        a(f"ds_read_b64_tr_b16 {vr(ZF+8,2)}, v11 offset:{2048+pad}")
        a(f"ds_read_b64_tr_b16 {vr(ZF+10,2)}, v11 offset:{2304+pad}")
        DB = 112
        for ks in range(3):
            a(f"s_waitcnt lgkmcnt({4-2*ks})")
            for tl in range(2):
                a(f"v_mfma_f32_32x32x16_bf16 {vr(DB+16*tl,16)}, {vr(F20+12*tl+4*ks,4)}, {vr(ZF+4*ks,4)}, {'0' if ks == 0 else vr(DB+16*tl,16)}")
        a("s_nop 7")
        a("s_nop 3")
        for q in list(range(10)) + [10]:
            src = DB + 2 * q if q < 10 else DB
            cw, sw = TW + 2 * q, TW + 2 * q + 1
            t = 160 + 3 * q
            a(f"v_mul_f32 v{t}, v{src}, v{cw}")
            a(f"v_mul_f32 v{t+1}, v{src+1}, v{cw}")
            a(f"v_fma_f32 v{t}, v{src+1}, v{sw}, v{t}")
            a(f"v_fma_f32 v{t+1}, -v{src}, v{sw}, v{t+1}")
            a(f"v_cvt_pk_bf16_f32 v{t+2}, v{t}, v{t+1}")
            if q == 10:
                a("s_mov_b32 exec_hi, 0")
                a(f"ds_write_b32 v8, v{t+2} offset:{20*VBS}")
                a("s_mov_b64 exec, -1")
            else:
                a(f"ds_write_b32 v8, v{t+2} offset:{q*VBS}")
        a(f"s_add_u32 s{sT2}, s{sB}, s{sWAVE}")
        a(f"s_lshl_b32 s{sT2}, s{sT2}, 7")
        a(f"s_add_u32 s{sT2}, s{sT2}, s{sT0}")
        a(f"s_sub_u32 s{sT3}, 2048, s{sT2}")
        a(f"s_and_b32 s{sT3}, s{sT3}, 2047")
        a(f"s_mul_i32 s{sT2}, s{sT2}, 2560")
        a(f"s_mul_i32 s{sT3}, s{sT3}, 2560")
        a("v_mul_u32_u24 v5, 40, v2")
        a("v_mul_u32_u24 v6, 20, v9")
        a("v_add_u32 v5, v5, v6")
        a(f"v_sub_u32 v6, {1280+1260}, v5")
        a("v_add_u32 v5, 1280, v5")
        a("s_waitcnt lgkmcnt(0)")
        for ks in range(4): a(f"ds_read_b128 {vr(16+4*ks,4)}, v12 offset:{32*ks}")
        DC = 144
        for ks in range(4):
            a(f"s_waitcnt lgkmcnt({3-ks})")
            a(f"v_mfma_f32_32x32x16_bf16 {vr(DC,16)}, {vr(16+4*ks,4)}, {vr(F32+4*ks,4)}, {'0' if ks == 0 else vr(DC,16)}")
        N = a.label("NOYST")
        a(f"s_cmp_ge_u32 s{sWAVE}, s{sT1}")
        a(f"s_cbranch_scc1 {N}")
        a("s_nop 7")
        a("s_nop 1")
        for i in range(5): a(f"v_cvt_pk_bf16_f32 v{32+i}, v{DC+2*i}, v{DC+2*i+1}")
        for i in range(5): a(f"v_cvt_pk_bf16_f32 v{40+i}, v{DC+10-2*i}, v{DC+9-2*i}")
        a(f"buffer_store_dwordx4 v[32:35], v5, {sr(sOUT)}, s{sT2} offen")
        a(f"buffer_store_dword v36, v5, {sr(sOUT)}, s{sT2} offen offset:16")
        a(f"buffer_store_dwordx4 v[40:43], v6, {sr(sOUT)}, s{sT3} offen")
        a(f"buffer_store_dword v44, v6, {sr(sOUT)}, s{sT3} offen offset:16")
        a(f"{N}:")

    def build(self):
        a = self.a
        self.prologue()
        a(f"s_cmp_ge_u32 s{sJ}, 16")
        a("s_cbranch_scc1 L_QB")
        a(f"s_cmp_ge_u32 s{sWAVE}, 4")
        a("s_cbranch_scc0 L_KV_CP")
        self.loader(True, "KV")
        a("s_branch L_PHI")
        a("L_KV_CP:")
        self.compute(True, "KV")
        a("s_branch L_PHI")
        a("L_QB:")
        a(f"s_cmp_ge_u32 s2, {128+NB1}")
        a("s_cbranch_scc1 L_ZERO")
        self.b1()
        a(f"s_movk_i32 s{sSIG}, 128")
        a("s_branch L_Q")
        a("L_ZERO:")
        a(f"s_mov_b32 s{sSIG}, 0")
        a(f"s_cmp_ge_u32 s{sWAVE}, 4")
        a("s_cbranch_scc1 L_Q")
        for r in range(4, 8): a(f"v_mov_b32 v{r}, 0")
        a("v_lshlrev_b32 v2, 4, v0")
        a(f"s_sub_u32 s{sA}, s2, {128+NB1}")
        a(f"s_lshl_b32 s{sA}, s{sA}, 12")
        a(f"buffer_store_dwordx4 v[4:7], v2, {sr(sWS)}, s{sA} offen sc1")
        a("L_Q:")
        self.st(3)
        a(f"s_cmp_ge_u32 s{sWAVE}, 4")
        a("s_cbranch_scc0 L_Q_CP")
        self.loader(False, "Q")
        a("s_branch L_PHI")
        a("L_Q_CP:")
        self.compute(False, "Q")
        a("L_PHI:")
        self.phi()
        if self.stamps: self.st(3 if False else 10)
        a(f"s_cmp_ge_u32 s{sJ}, 16")
        a("s_cbranch_scc1 L_QB2")
        self.kvpart()
        self.wo_dma()
        a(f"s_lshl_b32 s{sA}, s{sXCD}, 3")
        a(f"s_lshr_b32 s{sB}, s{sJL}, 1")
        a(f"s_add_u32 s{sA}, s{sA}, s{sB}")
        a(f"s_and_b32 s{sB}, s{sJL}, 1")
        a(f"s_lshl_b32 s{sB}, s{sB}, 3")
        a(f"s_mov_b32 s{sC}, 0")
        a(f"s_mov_b32 s{sD}, 1.0")
        a(f"s_mov_b32 s{sE}, 1.0")
        a(f"s_mov_b32 s{sF}, {f32(0.25)}")
        a(f"s_mov_b32 s{sT0}, s{sA}")
        a(f"s_mov_b32 s{sT1}, 8")
        a(f"s_cmp_lg_u32 s{sA}, 0")
        a("s_cbranch_scc1 L_B2")
        a(f"s_mov_b32 s{sE}, 0")
        a(f"s_cmp_eq_u32 s{sB}, 0")
        a("s_cbranch_scc1 L_B2")
        a(f"s_mov_b32 s{sB}, 0")
        a(f"s_mov_b32 s{sC}, 64")
        a(f"s_mov_b32 s{sD}, 0")
        a(f"s_mov_b32 s{sE}, 1.0")
        a(f"s_mov_b32 s{sF}, 0")
        a(f"s_mov_b32 s{sT0}, 64")
        a("s_branch L_B2")
        a("L_QB2:")
        self.wo_dma()
        a("s_cmp_lg_u32 s2, 255")
        a("s_cbranch_scc1 L_OSTEP")
        a(f"s_mov_b32 s{sA}, 0")
        a(f"s_mov_b32 s{sB}, 8")
        a(f"s_mov_b32 s{sC}, 0")
        a(f"s_mov_b32 s{sD}, 1.0")
        a(f"s_mov_b32 s{sE}, 0")
        a(f"s_mov_b32 s{sF}, {f32(0.25)}")
        a(f"s_mov_b32 s{sT0}, 0")
        a(f"s_mov_b32 s{sT1}, 1")
        a("L_B2:")
        self.b2()
        self.st(7)
        a(f"s_cmp_lt_u32 s{sJ}, 16")
        a("s_cbranch_scc1 L_FINAL")
        a("s_barrier")
        a("L_OSTEP:")
        self.st(4)
        self.ostep()
        a("L_FINAL:")
        self.final()
        if self.stamps and self.dbgspan:
            self.st(11)
            a("s_waitcnt lgkmcnt(0)")
            a("v_mov_b32 v2, 0")
            a("s_mov_b64 exec, 1")
            a(f"s_and_b32 s{sA}, s{sWAVE}, 3")
            a(f"s_cmp_lg_u32 s{sA}, 0")
            a("s_cbranch_scc1 L_END")
            a(f"s_not_b32 s{ST0}, s{ST0}")
            for n, i in enumerate(self.dbgspan):
                a(f"v_mov_b32 v4, s{ST0+2*i}")
                a(f"buffer_atomic_umax v4, v2, {sr(sDBG)}, 0 offen offset:{4*(n+1)}")
        elif self.stretch is not None:
            self.st(11)
        elif self.stamps:
            self.st(11)
            a("s_waitcnt lgkmcnt(0)")
            a(f"s_lshl_b32 s{sA}, s2, 3")
            a(f"s_add_u32 s{sA}, s{sA}, s{sWAVE}")
            a(f"s_lshl_b32 s{sA}, s{sA}, 7")
            a(f"s_add_u32 s{sA}, s{sA}, {STAMPS}")
            a("v_mov_b32 v2, 0")
            a("s_mov_b64 exec, 1")
            for i in range(12):
                a(f"v_mov_b32 v4, s{ST0+2*i}")
                a(f"v_mov_b32 v5, s{ST0+2*i+1}")
                a(f"buffer_store_dwordx2 v[4:5], v2, {sr(sWS)}, s{sA} offen offset:{8*i}")
        if self.stretch is not None:
            a("s_cmp_lg_u32 s2, 0")
            a("s_cbranch_scc1 L_END")
            a(f"s_cmp_lg_u32 s{sWAVE}, 0")
            a("s_cbranch_scc1 L_END")
            a(f"s_memrealtime s[{sA}:{sA+1}]")
            a("s_waitcnt lgkmcnt(0)")
            a(f"s_sub_u32 s{sC}, s{ST0+2*self.stretch}, s{ST0}")
            a(f"s_lshl_b32 s{sC}, s{sC}, 2")
            a(f"s_min_u32 s{sC}, s{sC}, 100000")
            a(f"s_add_u32 s{sC}, s{sC}, s{sA}")
            a("L_STRETCH:")
            a(f"s_memrealtime s[{sA}:{sA+1}]")
            a("s_waitcnt lgkmcnt(0)")
            a(f"s_cmp_lt_u32 s{sA}, s{sC}")
            a("s_cbranch_scc1 L_STRETCH")
        a("L_END:")
        a("s_endpgm")
        K = NAME + "_kernel"
        head = open("header.txt").read() if True else ""
        txt = head + f"; @launch grid=(256,1,1) block=(512,1,1) lds={LDS_BYTES}\n.amdgcn_target \"amdgcn-amd-amdhsa--gfx950\"\n"
        txt += kernel_head(K) + a.text() + kernel_desc(K, 256, 102, 256)
        return txt

if __name__ == "__main__":
    out = sys.argv[1]
    stretch = [int(x.split("=")[1]) for x in sys.argv if x.startswith("--stretch=")]
    g = Gen(stretch=stretch[0] if stretch else None, stamps="--stamps" in sys.argv or "--dbgspan" in sys.argv or bool(stretch), rot="--norot" not in sys.argv,
            dbgspan=list(range(12)) if "--dbgspan" in sys.argv else None)
    txt = g.build()
    open(out, "w").write(txt)
    bad = hazard.check(txt)
    print("lines", txt.count("\n"), "hazards", len(bad))
```

```python
import sys, math, struct
from asmlib import Asm, NAME, kernel_head, kernel_desc
import hazard

ACC = 0
KVC = 0x20000
OC = 0x20800
B1C = 0x22000
OB = 0x40000
UB = 0x300000
STAMPS = 0x600000
DUMP = 0x800000
WS_BYTES = 0x1000000
LDS_BYTES = 163840
WPHI = 156160
KVIMG = 155136
KVZERO = KVIMG + 6720
HAND = 0
VIMG = 12288; VS = 168
PHIMG = 88064; PS = 336
WOIMG = 36864
ZIMG = 0; ZS = 1288
VB = 139392; VBS = 144; VBW = 21 * 144
RED = 0
UST_KV = 88064; UST_Q = 57344; ZIMG_Q = 106496
STG = 57344
TABG = 0x30000
TAB = 137728
XBIMG = 114688
NINIT = 48; NB1 = 80
SPIN = 1 << 22

sX, sW, sPHI, sWO, sBX, sOUT, sDBG, sWS = 8, 12, 16, 20, 24, 28, 32, 36
sWAVE, sRB, sG, sJL, sXCD, sJ, sROT, sCW = 40, 41, 42, 43, 44, 45, 46, 47
sIT, sSLOT, sXK, sWK, sKI, sXROW, sWROW, sSIG = 48, 49, 50, 51, 52, 53, 54, 55
sT0, sT1, sT2, sT3, sT4, sT5 = 56, 57, 58, 59, 60, 61
sP, sSPIN = 62, 63
sEX = 64
sA, sB, sC, sD, sE, sF = 66, 67, 68, 69, 70, 71
ST0 = 72

def f32(x): return "0x%08x" % struct.unpack("<I", struct.pack("<f", x))[0]
def vr(b, n=1): return f"v{b}" if n == 1 else f"v[{b}:{b+n-1}]"
def sr(b, n=4): return f"s[{b}:{b+n-1}]"

class Gen:
    def __init__(self, stamps=False, dump=None, rot=True, dbgspan=None, stretch=None):
        self.depth = 3 if '--exp=d3' in sys.argv else 2; self.ramp = 1; self.sleep = {'b1': 8, 'init': 32, 'kv': 2, 'o': 2}
        for x in sys.argv:
            if x.startswith('--sleep='): k_, v_ = x[8:].split(':'); self.sleep[k_] = int(v_)
        self.stretch = stretch; self.exp = set(x[6:] for x in sys.argv if x.startswith('--exp='))
        self.a = Asm(); self.stamps = stamps; self.dump = dump; self.rot = rot; self.dbgspan = dbgspan
    def st(self, i):
        if self.stamps and (i in (0, 11) or not (self.exp & {"pb2", "pepi", "pb1", "pfin", "post", "ploop", "pst"})):
            self.a(f"s_memrealtime s[{ST0+2*i}:{ST0+2*i+1}]")
            if "clk" in self.exp and i in (1, 2): self.a(f"s_memtime s[{94+2*i}:{95+2*i}]")
    def fs(self, prof, i):
        if self.stamps and prof in self.exp:
            self.a(f"s_memrealtime s[{ST0+2*i}:{ST0+2*i+1}]")
    def align8(self):
        self.a(".p2align 3")

    def poll(self, srd, soff, target, name):
        a = self.a
        L = a.label("POLL"); D = a.label("POLLD")
        a("v_mov_b32 v2, 0")
        a(f"s_mov_b32 s{sSPIN}, {SPIN}")
        a(f"{L}:")
        a(f"buffer_load_dword v3, v2, {sr(srd)}, {soff} offen sc1")
        a("s_waitcnt vmcnt(0)")
        a(f"v_readfirstlane_b32 s{sT5}, v3")
        a(f"s_sub_u32 s{sSPIN}, s{sSPIN}, 1")
        a(f"s_cbranch_scc1 {D}")
        a(f"s_cmp_ge_u32 s{sT5}, {target}")
        a(f"s_cbranch_scc1 {D}")
        sl = self.sleep.get(name, 0)
        if sl: a(f"s_sleep {sl}")
        a(f"s_branch {L}")
        a(f"{D}:")
    def signal(self, srd, soff):
        a = self.a
        a("v_mov_b32 v2, 0")
        a("v_mov_b32 v3, 1")
        a(f"s_mov_b64 s[{sEX}:{sEX+1}], exec")
        a("s_mov_b64 exec, 1")
        a(f"buffer_atomic_add v3, v2, {sr(srd)}, {soff} offen")
        a(f"s_mov_b64 exec, s[{sEX}:{sEX+1}]")
    def signal16(self, done):
        a = self.a
        N = a.label("NOTLAST")
        a("v_mov_b32 v2, 128")
        a("v_mov_b32 v3, 1")
        a("s_mov_b64 exec, 1")
        a(f"buffer_atomic_add v3, v2, {sr(sDBG)}, 0 offen sc0")
        a("s_mov_b64 exec, -1")
        a("s_waitcnt vmcnt(0)")
        a(f"v_readfirstlane_b32 s{sT5}, v3")
        a("v_lshlrev_b32 v2, 8, v1")
        a(f"s_cmp_eq_u32 s{sT5}, {NB1-1}")
        a(f"s_cbranch_scc0 {N}")
        a("v_mov_b32 v3, 1")
        a(f"s_mov_b32 s{sT4}, {B1C}")
        a("s_mov_b64 exec, 0xff")
        a(f"buffer_store_dword v3, v2, {sr(sWS)}, s{sT4} offen sc1")
        a("s_mov_b64 exec, -1")
        a(f"s_branch {done}")
        a(f"{N}:")
    def b1_wait(self):
        a = self.a
        a(f"s_lshl_b32 s{sT4}, s{sXCD}, 8")
        a(f"s_add_u32 s{sT4}, s{sT4}, {B1C}")
        if "nob1poll" not in self.exp: self.poll(sWS, f"s{sT4}", 1, "b1")
    def trlane(self, blk, r, cq, h):
        a = self.a
        a(f"v_bfe_u32 v{blk}, v1, 4, 1")
        a(f"v_bfe_u32 v{r}, v1, 2, 2")
        a(f"v_and_b32 v{cq}, 3, v1")
        a(f"v_lshrrev_b32 v{h}, 5, v1")

    def entry(self):
        a = self.a
        a("s_cmp_ge_u32 s2, 256")
        a("s_cbranch_scc1 L_END")
        a(f"s_load_dwordx2 s[{sX}:{sX+1}], s[0:1], 0")
        a(f"s_load_dwordx2 s[{sW}:{sW+1}], s[0:1], 8")
        a(f"s_load_dwordx2 s[{sBX}:{sBX+1}], s[0:1], 32")
        a(f"s_load_dwordx2 s[{sWS}:{sWS+1}], s[0:1], 88")
        a("s_load_dwordx4 s[4:7], s[0:1], 16")
        a("s_load_dwordx4 s[56:59], s[0:1], 72")
        self.st(0)
        if self.stamps:
            for i in range(1, 12): a(f"s_mov_b64 s[{ST0+2*i}:{ST0+2*i+1}], 0")
        a("v_lshrrev_b32 v2, 6, v0")
        a("v_and_b32 v1, 63, v0")
        a(f"v_readfirstlane_b32 s{sWAVE}, v2")
        a(f"s_and_b32 s{sXCD}, s2, 7")
        a(f"s_lshr_b32 s{sJ}, s2, 3")
        a(f"s_and_b32 s{sJL}, s{sJ}, 15")
        a(f"s_and_b32 s{sRB}, s{sJL}, 3")
        a(f"s_lshr_b32 s{sG}, s{sJL}, 2")
        a(f"s_and_b32 s{sA}, s{sXCD}, 3")
        a(f"s_lshl2_add_u32 s{sRB}, s{sA}, s{sRB}")
        a(f"s_lshr_b32 s{sA}, s{sXCD}, 2")
        a(f"s_lshl2_add_u32 s{sG}, s{sA}, s{sG}")
        a(f"s_and_b32 s{sCW}, s{sWAVE}, 3")
        a(f"s_lshr_b32 s{sP}, s{sWAVE}, 2")
        for s_, nb in ((sX, 2048*1280), (sW, 640*3840)):
            a(f"s_mov_b32 s{s_+2}, {nb}")
            a(f"s_mov_b32 s{s_+3}, 0x20000")
    def kwait(self):
        a = self.a
        a("s_waitcnt lgkmcnt(0)")
    def kfinish(self):
        a = self.a
        for s_, nb in ((sBX, 2048*1280), (sWS, WS_BYTES), (sPHI, 32*800), (sWO, 640*1280), (sOUT, 2048*2560), (sDBG, 256)):
            a(f"s_mov_b32 s{s_+2}, {nb}")
            a(f"s_mov_b32 s{s_+3}, 0x20000")
        a(f"s_mov_b64 s[{sPHI}:{sPHI+1}], s[4:5]")
        a(f"s_mov_b64 s[{sWO}:{sWO+1}], s[6:7]")
        a(f"s_mov_b64 s[{sOUT}:{sOUT+1}], s[56:57]")
        a(f"s_mov_b64 s[{sDBG}:{sDBG+1}], s[58:59]")

    LX, LW = 236, 240
    def loader_setup(self, kv):
        self.loader_setup_x(kv); self.loader_setup_w(kv)
    def loader_setup_x(self, kv):
        a = self.a
        NP = 5 if kv else 3
        CPR = 20 if kv else 12
        vX, vW = self.LX, self.LW
        a("v_lshrrev_b32 v2, 3, v1")
        a("v_and_b32 v3, 7, v1")
        a("v_lshrrev_b32 v13, 4, v1")
        a("v_xor_b32 v3, v3, v13")
        a("v_mul_u32_u24 v2, 1280, v2")
        a(f"v_lshl_add_u32 v{vX}, v3, 4, v2")
        a(f"v_xor_b32 v3, 64, v{vX}")
        a(f"v_add_u32 v{vX+1}, {10240-1024}, v3")
        a(f"v_add_u32 v{vX+2}, {2*(10240-1024)}, v{vX}")
        a(f"v_add_u32 v{vX+3}, {3*(10240-1024)}, v3")
        a(f"s_lshl2_add_u32 s{sXK}, s{sRB}, s{sCW}")
        a(f"s_mul_i32 s{sXK}, s{sXK}, {32*1280}")
        a(f"s_lshl_b32 s{sSLOT}, s{sCW}, 12")
    def loader_setup_w(self, kv):
        a = self.a
        NP = 5 if kv else 3
        CPR = 20 if kv else 12
        vX, vW = self.LX, self.LW
        a(f"s_mul_i32 s{sXROW}, s{sCW}, {NP*1024 - 4096}")
        a(f"s_add_u32 s{sXROW}, s{sXROW}, 16384")
        a(f"s_mul_i32 s{sWK}, s{sCW}, {16*3840}")
        a(f"s_mul_i32 s{sA}, s{sG}, 160")
        a(f"s_add_u32 s{sWK}, s{sWK}, s{sA}")
        if kv: a(f"s_add_u32 s{sWK}, s{sWK}, 1280")
        mul = (65536 + CPR - 1) // CPR
        for q in range(64 * NP): assert (q * mul) >> 16 == q // CPR
        a(f"v_mov_b32 v14, {1120 if kv else 0x40000000}")
        T = 4
        for i in range(NP): a(f"v_add_u32 v{T+i}, {64*i}, v1")
        for i in range(NP): a(f"v_mul_u32_u24 v{vW+i}, {mul}, v{T+i}")
        for i in range(NP): a(f"v_lshrrev_b32 v{vW+i}, 16, v{vW+i}")
        a(f"s_movk_i32 s{sA}, {-CPR}")
        for i in range(NP): a(f"v_mad_i32_i24 v{T+i}, v{vW+i}, s{sA}, v{T+i}")
        for i in range(NP):
            comp = 1024 * i if i < 4 else 0
            a(f"v_cmp_lt_u32 vcc, 9, v{T+i}")
            a(f"v_mul_u32_u24 v{vW+i}, 3840, v{vW+i}")
            a(f"v_lshl_add_u32 v{vW+i}, v{T+i}, 4, v{vW+i}")
            a(f"v_cndmask_b32 v{T+i}, 0, v14, vcc")
            if comp: a(f"v_subrev_u32 v{vW+i}, {comp}, v{vW+i}")
            a(f"v_add_u32 v{vW+i}, v{vW+i}, v{T+i}")
    def loader_issue(self, kv, slab, mid=None):
        a = self.a
        NP = 5 if kv else 3
        SLOT = 16384 + NP * 4096
        vX, vW = self.LX, self.LW
        so = (slab % 4) * SLOT
        if "nodma" in self.exp or ("qnodma" in self.exp and not kv): return
        a(f"s_add_u32 m0, s{sSLOT}, {so}")
        if slab:
            a(f"s_add_u32 s{sXK}, s{sXK}, 128")
        else: a("s_nop 0")
        for i in range(4):
            a(f"buffer_load_dwordx4 v{vX+i}, {sr(sX)}, s{sXK} offen offset:{1024*i} lds")
        if mid: mid()
        a(f"s_add_u32 m0, m0, s{sXROW}")
        if slab:
            a(f"s_add_u32 s{sWK}, s{sWK}, {64*3840}")
        else: a("s_nop 0")
        for i in range(min(NP, 4)):
            a(f"buffer_load_dwordx4 v{vW+i}, {sr(sW)}, s{sWK} offen offset:{1024*i} lds")
        if NP == 5:
            a("s_add_u32 m0, m0, 4096")
            a("s_nop 0")
            a(f"buffer_load_dwordx4 v{vW+4}, {sr(sW)}, s{sWK} offen lds")
    def init_check(self):
        a = self.a
        OK = a.label("INITOK")
        a(f"v_readfirstlane_b32 s{sT5}, v14")
        a("s_nop 0")
        a(f"s_cmp_ge_u32 s{sT5}, {NINIT}")
        a(f"s_cbranch_scc1 {OK}")
        if "noinitpoll" not in self.exp: self.poll(sDBG, 0, NINIT, "init")
        a(f"{OK}:")
    def loader_loop(self, kv, extra=0):
        a = self.a
        per = 4 + (5 if kv else 3)
        D = self.depth
        nxt = 2
        for it in range(10):
            n = per * (nxt - it - 1) + (extra if it < 2 else 0)
            if it == 9: a(f"s_waitcnt vmcnt({n}) lgkmcnt(0)")
            else: a(f"s_waitcnt vmcnt({n})")
            a("s_barrier")
            while nxt < 10 and nxt <= it + D and not (nxt == it + 3 and it < self.ramp):
                self.loader_issue(kv, nxt); nxt += 1
            if not kv and it == 3:
                S = a.label("NOSIG")
                a(f"s_cmp_eq_u32 s{sWAVE}, 4")
                a(f"s_cbranch_scc0 {S}")
                a(f"s_cmp_ge_u32 s2, {128+NB1}")
                a(f"s_cbranch_scc1 {S}")
                a(f"s_movk_i32 s{sT4}, 128")
                self.signal(sDBG, f"s{sT4}")
                a(f"{S}:")
            if it == 8: self.wphi_write(None)
            if it == 6:
                a("v_mov_b32 v2, 0")
                a(f"buffer_load_dword v14, v2, {sr(sDBG)}, 0 offen sc1")
        for r in self.wphi_frags(): a(r)
        self.init_check()
        a("s_waitcnt lgkmcnt(0)")

    def l2warm(self, zero):
        a = self.a
        for n in range(2):
            E = a.label("NOPF"); Wl = a.label("PFW")
            if zero:
                a(f"s_lshl2_add_u32 s{sA}, s{sJL}, s{sCW}")
                a(f"s_add_u32 s{sA}, s{sA}, {18 + 128 - 40 + 24*n}")
            else:
                a(f"s_lshl2_add_u32 s{sA}, s{sJL}, s{sCW}")
                a(f"s_add_u32 s{sA}, s{sA}, {18 + 64*n}")
            if n: a(f"s_min_u32 s{sA}, s{sA}, 180")
            a(f"s_mul_i32 s{sB}, s{sA}, 3641")
            a(f"s_lshr_b32 s{sB}, s{sB}, 16")
            a(f"s_mul_i32 s{sC}, s{sB}, 18")
            a(f"s_sub_u32 s{sC}, s{sA}, s{sC}")
            a(f"s_cmp_ge_u32 s{sC}, 8")
            a(f"s_cbranch_scc1 {Wl}")
            if n:
                a(f"s_cmp_eq_u32 s{sB}, 10")
                a(f"s_cselect_b32 s{sC}, 8, s{sC}")
                a(f"s_cbranch_scc1 {Wl}")
            a(f"s_and_b32 s{sD}, s{sXCD}, 3")
            a(f"s_lshl_b32 s{sD}, s{sD}, 3")
            a(f"s_add_u32 s{sD}, s{sD}, s{sC}")
            a(f"s_mul_i32 s{sD}, s{sD}, {64*1280}")
            a(f"s_lshl_b32 s{sB}, s{sB}, 7")
            a(f"s_add_u32 s{sD}, s{sD}, s{sB}")
            a("v_mul_u32_u24 v250, 1280, v1")
            a(f"buffer_load_dword v251, v250, {sr(sX)}, s{sD} offen")
            a(f"s_branch {E}")
            a(f"{Wl}:")
            a(f"s_sub_u32 s{sC}, s{sC}, 8")
            a(f"s_cmp_ge_u32 s{sC}, 5")
            a(f"s_cselect_b32 s{sD}, {1280-640}, 0")
            a(f"s_lshl_b32 s{sC}, s{sC}, 7")
            a(f"s_add_u32 s{sD}, s{sD}, s{sC}")
            a(f"s_lshr_b32 s{sC}, s{sXCD}, 2")
            a(f"s_mul_i32 s{sC}, s{sC}, 640")
            a(f"s_add_u32 s{sD}, s{sD}, s{sC}")
            a(f"s_mul_i32 s{sB}, s{sB}, {64*3840}")
            a(f"s_add_u32 s{sD}, s{sD}, s{sB}")
            a(f"s_add_u32 s{sD}, s{sD}, 1280")
            a("v_mul_u32_u24 v250, 3840, v1")
            a(f"buffer_load_dword v251, v250, {sr(sW)}, s{sD} offen")
            a(f"{E}:")
        for i in range(181): assert (i * 3641) >> 16 == i // 18

    def wphi_issue(self):
        a = self.a
        a(f"s_lshl2_add_u32 s{sA}, s{sG}, s{sCW}")
        a(f"s_mul_i32 s{sA}, s{sA}, 800")
        a("v_lshlrev_b32 v2, 3, v1")
        a("v_add_u32 v3, 512, v2")
        a("v_cmp_gt_u32 vcc, 36, v1")
        a("v_mov_b32 v9, 0x40000000")
        a(f"buffer_load_dwordx2 v[200:201], v2, {sr(sPHI)}, s{sA} offen")
        a("v_cndmask_b32 v3, v9, v3, vcc")
        a(f"buffer_load_dwordx2 v[204:205], v3, {sr(sPHI)}, s{sA} offen")
    def wphi_write(self, wait):
        a = self.a
        a(f"s_mul_i32 s{sA}, s{sCW}, 1600")
        a(f"s_lshr_b32 s{sB}, s{sCW}, 1")
        a(f"s_mul_i32 s{sB}, s{sB}, 1280")
        a(f"s_add_u32 s{sA}, s{sA}, s{sB}")
        a(f"s_add_u32 s{sA}, s{sA}, {WPHI}")
        a(f"v_lshl_add_u32 v2, v1, 4, s{sA}")
        a(f"s_and_b32 s{sB}, s{sCW}, 1")
        a(f"s_cmp_eq_u32 s{sB}, 0")
        a(f"s_cselect_b32 s{sB}, -1, 0")
        a(f"s_not_b32 s{sC}, s{sB}")
        if wait is not None: a(f"s_waitcnt vmcnt({wait})")
        for b in (200, 204):
            a(f"v_and_b32 v{b+2}, s{sC}, v{b}")
            a(f"v_and_b32 v{b+3}, s{sC}, v{b+1}")
            a(f"v_and_b32 v{b}, s{sB}, v{b}")
            a(f"v_and_b32 v{b+1}, s{sB}, v{b+1}")
        a("ds_write_b128 v2, v[200:203]")
        a("v_cmp_gt_u32 vcc, 36, v1")
        a(f"s_and_saveexec_b64 s[{sEX}:{sEX+1}], vcc")
        a("ds_write_b128 v2, v[204:207] offset:1024")
        a("s_mov_b64 exec, 0xfffff")
        a(f"s_mul_i32 s{sA}, s{sCW}, 320")
        a(f"s_add_u32 s{sA}, s{sA}, {WPHI+3200}")
        a(f"v_lshl_add_u32 v2, v1, 4, s{sA}")
        for r in range(208, 212): a(f"v_mov_b32 v{r}, 0")
        a("ds_write_b128 v2, v[208:211]")
        a(f"s_mov_b64 exec, s[{sEX}:{sEX+1}]")

    A1, A2 = 164, 176
    vHA, vWF, vPW, vVA, vPA, vAT0, vAT1, vVW, vVO = 188, 189, 190, 191, 192, 193, 194, 195, 196
    WOA = 245
    def epi_setup(self, kv):
        a = self.a
        a(f"s_mul_i32 s{sA}, s{sCW}, 3072")
        a(f"v_lshl_add_u32 v{self.vHA}, v1, 4, s{sA}")
        self.trlane(10, 11, 12, 9)
        a("v_lshl_add_u32 v13, v10, 2, v12")
        a("v_lshl_add_u32 v14, v9, 2, v11")
        a("v_mul_u32_u24 v14, 80, v14")
        a("v_lshl_add_u32 v14, v13, 3, v14")
        a(f"s_mul_i32 s{sA}, s{sP}, 3840")
        a(f"s_add_u32 s{sA}, s{sA}, {WPHI}")
        a(f"v_add_u32 v{self.vWF}, s{sA}, v14")
        if kv:
            a("v_and_b32 v2, 31, v1")
            a(f"s_lshl_b32 s{sA}, s{sCW}, 5")
            a(f"v_add_u32 v3, s{sA}, v2")
            a(f"v_mul_u32_u24 v{self.vVO}, {VS}, v3")
            a(f"v_lshl_add_u32 v{self.vVW}, v9, 3, v{self.vVO}")
            a(f"v_mul_u32_u24 v3, {PS}, v3")
            a("v_mul_u32_u24 v14, 80, v9")
            a(f"s_mul_i32 s{sA}, s{sP}, 160")
            a(f"s_add_u32 s{sA}, s{sA}, {PHIMG}")
            a(f"v_add3_u32 v{self.vPW}, v3, v14, s{sA}")
            a("v_lshl_add_u32 v11, v9, 3, v11")
            a(f"s_mul_i32 s{sA}, s{sCW}, 40")
            a(f"v_lshl_add_u32 v14, v13, 3, s{sA}")
            a("v_mov_b32 v15, 160")
            a("v_cmp_gt_u32 vcc, 5, v13")
            a(f"v_mul_u32_u24 v4, {VS}, v11")
            a(f"v_mul_u32_u24 v5, {PS}, v11")
            a("v_cndmask_b32 v14, v15, v14, vcc")
            a(f"v_add_u32 v{self.vVA}, v4, v14")
            a(f"s_mul_i32 s{sA}, s{sCW}, 80")
            a(f"s_lshl_b32 s{sB}, s{sP}, 6")
            a(f"s_add_u32 s{sA}, s{sA}, s{sB}")
            a(f"s_add_u32 s{sA}, s{sA}, {PHIMG}")
            a("v_lshl_add_u32 v5, v13, 3, v5")
            a(f"v_add_u32 v{self.vPA}, s{sA}, v5")
            a("v_lshlrev_b32 v6, 2, v2")
            a("v_mul_u32_u24 v3, 768, v9")
            a("v_add_u32 v6, v6, v3")
            a(f"s_cmp_eq_u32 s{sP}, 0")
            a(f"s_cselect_b32 s{sA}, 32, 8")
            a("v_mov_b32 v15, 0x40000000")
            a(f"v_cmp_gt_u32 vcc, s{sA}, v2")
            a(f"s_lshl2_add_u32 s{sKI}, s{sG}, s{sCW}")
            a(f"s_mul_i32 s{sKI}, s{sKI}, 4032")
            a(f"v_cndmask_b32 v{self.vAT0}, v15, v6, vcc")
            a("v_cmp_gt_u32 vcc, 32, v1")
            a(f"s_lshl_b32 s{sA}, s{sP}, 7")
            a(f"s_add_u32 s{sKI}, s{sKI}, s{sA}")
            a(f"v_cndmask_b32 v{self.vAT1}, v15, v{self.vAT0}, vcc")
        V = self.WOA
        mul = (65536 + 9) // 10
        for q in range(320): assert (q * mul) >> 16 == q // 10
        for i in range(5): a(f"v_add_u32 v{4+i}, {64*i}, v1")
        for i in range(5): a(f"v_mul_u32_u24 v{V+i}, {mul}, v{4+i}")
        for i in range(5): a(f"v_lshrrev_b32 v{V+i}, 16, v{V+i}")
        for i in range(5): a(f"v_mul_u32_u24 v{V+i}, {1280-160}, v{V+i}")
        for i in range(5): a(f"v_lshl_add_u32 v{V+i}, v{4+i}, 4, v{V+i}")
        for i in range(1, 4): a(f"v_subrev_u32 v{V+i}, {1024*i}, v{V+i}")
    def wphi_frags(self):
        return ([f"ds_read_b64_tr_b16 {vr(self.A1+4*s+2*j,2)}, v{self.vWF} offset:{(16*s+8*j)*80}" for s in range(3) for j in range(2)] +
                [f"ds_read_b64_tr_b16 {vr(self.A2+4*s+2*j,2)}, v{self.vWF} offset:{(16*s+8*j)*80+64}" for s in range(3) for j in range(2)])

    def compute_setup(self, kv):
        a = self.a
        NT = 5 if kv else 3
        RSW = 320 if kv else 192
        SLOT = 16384 + NT * 4096
        XA, WA = 144, 160
        a("v_and_b32 v2, 31, v1")
        a("v_bfe_u32 v3, v1, 1, 3")
        a("v_lshrrev_b32 v9, 5, v1")
        a("v_xor_b32 v3, v3, v9")
        a(f"s_lshl_b32 s{sA}, s{sCW}, 12")
        a("v_lshlrev_b32 v2, 7, v2")
        a("v_lshl_add_u32 v2, v3, 4, v2")
        a(f"v_add_u32 v{XA}, s{sA}, v2")
        for k in range(1, 4): a(f"v_xor_b32 v{XA+k}, {32*k}, v{XA}")
        for sl in range(1, 4):
            for k in range(4): a(f"v_add_u32 v{XA+4*sl+k}, {sl*SLOT}, v{XA+k}")
        self.trlane(10, 11, 12, 9)
        a("v_lshl_add_u32 v11, v9, 3, v11")
        a(f"v_mul_u32_u24 v11, {RSW}, v11")
        a("v_lshl_add_u32 v11, v10, 5, v11")
        a("v_lshl_add_u32 v11, v12, 3, v11")
        for sl in range(4): a(f"v_add_u32 v{WA+sl}, {16384+sl*SLOT}, v11")
    def compute(self, kv):
        a = self.a
        NT = 5 if kv else 3
        RSW = 320 if kv else 192
        ACCR = 16
        FX = [96, 120]; FA = [100, 124]
        XA, WA = 144, 160
        def reads(buf, it, ks):
            sl = it % 4
            out = [f"ds_read_b128 {vr(FX[buf],4)}, v{XA+4*sl+ks}"]
            for t in range(NT):
                for j in range(2):
                    out.append(f"ds_read_b64_tr_b16 {vr(FA[buf]+4*t+2*j,2)}, v{WA+sl} offset:{(16*ks+4*j)*RSW+64*t}")
            if "noread" in self.exp: out = []
            return out
        def step(mb, rd, waited, first=False):
            plan = [3, 3, 3, 2, 0] if NT == 5 else [3, 2, 2]
            older = 1 + 2 * NT; new = 0; pos = 0
            for t in range(NT):
                if not waited:
                    a(f"s_waitcnt lgkmcnt({older - (1 + 2 * (t + 1)) + new})")
                if "nomfma" not in self.exp:
                    a(f"v_mfma_f32_32x32x16_bf16 {vr(ACCR+16*t,16)}, {vr(FA[mb]+4*t,4)}, {vr(FX[mb],4)}, {'0' if first else vr(ACCR+16*t,16)}")
                for k in range(plan[t]):
                    if pos < len(rd): a(rd[pos]); pos += 1; new += 1
        a("s_waitcnt lgkmcnt(0)")
        for it in range(10):
            a("s_barrier")
            self.fs("ploop", it + 1)
            if it == 0: self.fs("pst", 7)
            if self.stamps and "ploop" in self.exp and it: a("s_nop 0"); a("s_nop 0")
            if it == 0:
                self.st(1)
                self.align8()
                for r in reads(0, 0, 0): a(r)
            else:
                step(1, reads(0, it, 0), True)
            step(0, reads(1, it, 1), False, first=(it == 0))
            step(1, reads(0, it, 2), False)
            step(0, reads(1, it, 3), False)
            a("s_waitcnt vmcnt(0) lgkmcnt(0)" if (not kv and it == 2) else "s_waitcnt lgkmcnt(0)")
            a("s_nop 0")
        fr = self.wphi_frags()
        step(1, fr[:11 if NT == 5 else 7], True)
        for r in fr[11 if NT == 5 else 7:]: a(r)
        self.st(2)
        self.fs("pepi", 1)
        KB = 96
        a("s_nop 7")
        a("s_nop 0" if NT == 5 else "s_nop 2")
        for s_ in (2, 3, 4, 0, 1):
            base = ACCR + 16 * (s_ >> 1) + 8 * (s_ & 1)
            for q in range(4):
                a(f"v_cvt_pk_bf16_f32 v{KB+4*s_+q}, v{base+2*q}, v{base+2*q+1}")
            if s_ >= 2: a(f"ds_write_b128 v{self.vHA}, {vr(KB+4*s_,4)} offset:{HAND+1024*(s_-2)}")
        a("s_waitcnt lgkmcnt(0)")

    def phi(self):
        a = self.a
        KB = 96
        A1, A2, P1, P2 = self.A1, self.A2, 16, 32
        self.fs("pepi", 2)
        a("s_barrier")
        self.fs("pepi", 3)
        H = a.label("NOHAND")
        a(f"s_cmp_eq_u32 s{sP}, 0")
        a(f"s_cbranch_scc1 {H}")
        for s_ in range(3):
            a(f"ds_read_b128 {vr(KB+4*s_,4)}, v{self.vHA} offset:{HAND+1024*s_}")
        a("s_waitcnt lgkmcnt(0)")
        a(f"{H}:")
        for s_ in range(3):
            a(f"v_mfma_f32_32x32x16_bf16 {vr(P1,16)}, {vr(A1+4*s_,4)}, {vr(KB+4*s_,4)}, {'0' if s_ == 0 else vr(P1,16)}")
        for s_ in range(3):
            a(f"v_mfma_f32_32x32x16_bf16 {vr(P2,16)}, {vr(A2+4*s_,4)}, {vr(KB+4*s_,4)}, {'0' if s_ == 0 else vr(P2,16)}")
        NV = a.label("NOV")
        a(f"s_lshr_b32 s{sA}, s{sJ}, 4")
        a(f"s_or_b32 s{sA}, s{sA}, s{sP}")
        a(f"s_cbranch_scc1 {NV}")
        for vq in range(10):
            base = 16 + 32 + 8 + 4 * vq
            t = 200 + 2 * (vq % 5)
            if vq == 5: a("s_waitcnt lgkmcnt(0)")
            a(f"v_cvt_pk_bf16_f32 v{t}, v{base}, v{base+1}")
            a(f"v_cvt_pk_bf16_f32 v{t+1}, v{base+2}, v{base+3}")
            a(f"ds_write_b64 v{self.vVW}, {vr(t,2)} offset:{VIMG+16*vq}")
        a("v_mov_b32 v210, 0x3f80")
        a("v_mov_b32 v211, 0")
        a(f"ds_write_b64 v{self.vVO}, v[210:211] offset:{VIMG+160}")
        a(f"{NV}:")
        self.fs("pepi", 4)
        a("s_nop 5")
        p = [P1 + i for i in range(20)]
        MX, MN = 236, 237
        a(f"v_max3_f32 v{MX}, v{p[0]}, v{p[1]}, v{p[2]}")
        a(f"v_min3_f32 v{MN}, v{p[0]}, v{p[1]}, v{p[2]}")
        for i in range(3, 19, 2):
            a(f"v_max3_f32 v{MX}, v{MX}, v{p[i]}, v{p[i+1]}")
            a(f"v_min3_f32 v{MN}, v{MN}, v{p[i]}, v{p[i+1]}")
        a(f"s_mov_b32 s{sA}, {f32(math.log2(math.e))}")
        a(f"v_max_f32 v{MX}, v{MX}, v{p[19]}")
        a(f"v_min_f32 v{MN}, v{MN}, v{p[19]}")
        a(f"v_mul_f32 v{MX}, s{sA}, v{MX}")
        a(f"v_mul_f32 v{MN}, s{sA}, v{MN}")
        EP, EM = 96, 120
        S0, S2 = 238, 240
        wo = self.wo_list(0)
        a(f"v_mov_b32 v242, s{sA}")
        a(f"v_mov_b32 v243, s{sA}")
        for i in range(0, 20, 2):
            a(f"v_pk_fma_f32 {vr(EP+i,2)}, {vr(p[i],2)}, v[242:243], {vr(MX,2)} op_sel_hi:[1,1,0] neg_lo:[0,0,1] neg_hi:[0,0,1]")
            a(f"v_pk_fma_f32 {vr(EM+i,2)}, {vr(p[i],2)}, v[242:243], {vr(MX,2)} op_sel:[0,0,1] op_sel_hi:[1,1,1] neg_lo:[1,0,0] neg_hi:[1,0,0]")
        for i in range(0, 20, 2):
            for z in range(2):
                a(f"v_exp_f32 v{EP+i+z}, v{EP+i+z}")
                a(f"v_exp_f32 v{EM+i+z}, v{EM+i+z}")
            if i == 4:
                a(f"v_pk_add_f32 {vr(S0,2)}, {vr(EP,2)}, {vr(EP+2,2)}")
                a(f"v_pk_add_f32 {vr(S2,2)}, {vr(EM,2)}, {vr(EM+2,2)}")
            elif i > 4:
                a(f"v_pk_add_f32 {vr(S0,2)}, {vr(S0,2)}, {vr(EP+i-2,2)}")
                a(f"v_pk_add_f32 {vr(S2,2)}, {vr(S2,2)}, {vr(EM+i-2,2)}")
            if i >= 2 and wo and i <= 12:
                for x in wo.pop(0): a(x)
        a("s_nop 0")
        a(f"v_pk_add_f32 {vr(S0,2)}, {vr(S0,2)}, {vr(EP+18,2)}")
        a(f"v_pk_add_f32 {vr(S2,2)}, {vr(S2,2)}, {vr(EM+18,2)}")
        a(f"v_add_f32 v{S0}, v{S0}, v{S0+1}")
        a(f"v_add_f32 v{S2}, v{S2}, v{S2+1}")
        self.fs("pepi", 5)
        a(f"v_rcp_f32 v{S0}, v{S0}")
        a(f"v_rcp_f32 v{S2}, v{S2}")
        a("s_nop 0")
        PF = 216
        for i in range(0, 20, 2):
            a(f"v_pk_mul_f32 {vr(EP+i,2)}, {vr(EP+i,2)}, {vr(S0,2)} op_sel_hi:[1,0]")
            a(f"v_pk_mul_f32 {vr(EM+i,2)}, {vr(EM+i,2)}, {vr(S2,2)} op_sel_hi:[1,0]")
            a(f"v_cvt_pk_bf16_f32 v{PF+i//2}, v{EP+i}, v{EP+i+1}")
            a(f"v_cvt_pk_bf16_f32 v{PF+10+i//2}, v{EM+i}, v{EM+i+1}")
        assert not wo

    def kvpart(self):
        a = self.a
        PF = 216
        self.fs("pepi", 6)
        for c in range(5):
            a(f"ds_write_b128 v{self.vPW}, {vr(PF+4*c,4)} offset:{16*c}")
        a("s_waitcnt lgkmcnt(0)")
        self.fs("pepi", 7)
        a("s_barrier")
        self.fs("pepi", 8)
        FA, FB, D = 16, 48, 80
        def rd(ks):
            for j in range(2):
                a(f"ds_read_b64_tr_b16 {vr(FA+4*ks+2*j,2)}, v{self.vVA} offset:{VIMG+(16*ks+4*j)*VS}")
            for j in range(2):
                a(f"ds_read_b64_tr_b16 {vr(FB+4*ks+2*j,2)}, v{self.vPA} offset:{(16*ks+4*j)*PS}")
        for ks in range(3): rd(ks)
        for ks in range(8):
            left = min(2, 7 - ks) * 4
            a(f"s_waitcnt lgkmcnt({left})")
            a(f"v_mfma_f32_32x32x16_bf16 {vr(D,16)}, {vr(FA+4*ks,4)}, {vr(FB+4*ks,4)}, {'0' if ks == 0 else vr(D,16)}")
            if ks + 3 < 8: rd(ks + 3)
        self.fs("pepi", 9)
        a("s_nop 7")
        a("s_nop 3")
        for j in range(3):
            for i in range(4):
                v = self.vAT0 if (j < 2 or i == 0) else self.vAT1
                a(f"buffer_atomic_add_f32 v{D+4*j+i}, v{v}, {sr(sWS)}, s{sKI} offen offset:{(8*j+i)*192}")
        self.st(4)
        self.fs("pepi", 10)
        self.b2_prep(False)
        a("s_waitcnt vmcnt(0) lgkmcnt(0)")
        a("s_barrier")
        self.st(5)
        S = a.label("NOKVSIG")
        a(f"s_cmp_eq_u32 s{sWAVE}, 0")
        a(f"s_cbranch_scc0 {S}")
        a(f"s_lshl_b32 s{sT4}, s{sG}, 8")
        a(f"s_add_u32 s{sT4}, s{sT4}, {KVC}")
        self.signal(sWS, f"s{sT4}")
        a(f"{S}:")

    def wo_list(self, half):
        V = self.WOA
        pre = [f"s_lshr_b32 s{sT2}, s{sJ}, 2", f"s_mul_i32 s{sT2}, s{sT2}, 160", f"s_mul_i32 s{sT3}, s{sWAVE}, {32*1280}",
               f"s_add_u32 s{sT2}, s{sT2}, s{sT3}", f"s_add_u32 s{sT2}, s{sT2}, {half*320*1280}",
               f"s_mul_i32 s{sT3}, s{sWAVE}, 5120", f"s_add_u32 m0, s{sT3}, {WOIMG + half*51200}"]
        L = [pre + ["s_nop 0", f"buffer_load_dwordx4 v{V}, {sr(sWO)}, s{sT2} offen lds"]]
        for i in range(1, 4): L.append([f"buffer_load_dwordx4 v{V+i}, {sr(sWO)}, s{sT2} offen offset:{1024*i} lds"])
        L.append(["s_add_u32 m0, m0, 4096", "s_nop 0", f"buffer_load_dwordx4 v{V+4}, {sr(sWO)}, s{sT2} offen lds"])
        E = self.a.label("WOE")
        ex = [f"s_cmp_ge_u32 s{sWAVE}, 2", f"s_cbranch_scc1 {E}", f"s_add_u32 s{sT2}, s{sT2}, {8*32*1280}", f"s_add_u32 m0, m0, {8*5120-4096}", "s_nop 0"]
        ex += [f"buffer_load_dwordx4 v{V+i}, {sr(sWO)}, s{sT2} offen offset:{1024*i} lds" for i in range(4)]
        ex += ["s_add_u32 m0, m0, 4096", "s_nop 0", f"buffer_load_dwordx4 v{V+4}, {sr(sWO)}, s{sT2} offen lds", f"{E}:"]
        L.append(ex)
        return L
    def wo_dma(self, half):
        for g_ in self.wo_list(half):
            for i in g_: self.a(i)

    def ostep(self):
        a = self.a
        PF = 216
        a("v_mov_b32 v4, 0"); a("v_mov_b32 v5, 0")
        a("v_lshlrev_b32 v2, 3, v1")
        a("s_mov_b64 exec, 0xffff")
        a(f"v_add_u32 v2, {KVZERO}, v2")
        a("ds_write_b64 v2, v[4:5]")
        a("s_mov_b64 exec, -1")
        mul = (65536 + 9) // 10
        for q in range(840): assert (q * mul) >> 16 == q // 10
        for i in range(2):
            a(f"v_add_u32 v2, {512*i}, v0")
            a(f"v_mul_u32_u24 v3, {mul}, v2")
            a("v_lshrrev_b32 v3, 16, v3")
            a("v_mul_u32_u24 v3, 32, v3")
            a(f"v_lshl_add_u32 v{6+i}, v2, 4, v3")
        a("v_cmp_gt_u32 vcc, 328, v0")
        a("v_mov_b32 v15, 0x40000000")
        a("v_lshlrev_b32 v8, 3, v0")
        a("v_cndmask_b32 v7, v15, v7, vcc")
        a(f"v_add_u32 v8, {KVIMG}, v8")
        a("v_bfe_u32 v9, v1, 2, 1")
        a("v_bfe_u32 v10, v1, 3, 2")
        a("v_and_b32 v11, 3, v1")
        a("v_lshl_add_u32 v10, v10, 2, v11")
        a("v_add_u32 v11, 16, v10")
        a("v_min_u32 v11, 20, v11")
        a("v_mul_u32_u24 v12, 21, v9")
        a(f"s_mul_i32 s{sA}, s{sP}, 42")
        a(f"v_add_u32 v12, s{sA}, v12")
        a("v_add_u32 v10, v10, v12")
        a("v_add_u32 v11, v11, v12")
        a("v_mul_u32_u24 v10, 80, v10")
        a("v_mul_u32_u24 v11, 80, v11")
        a("v_lshrrev_b32 v12, 5, v1")
        a("v_cmp_eq_u32 vcc, v12, v9")
        a("v_mov_b32 v13, 6720")
        a(f"s_mul_i32 s{sB}, s{sG}, {4*4032}")
        a("v_cndmask_b32 v10, v13, v10, vcc")
        a("v_cndmask_b32 v11, v13, v11, vcc")
        a(f"v_add_u32 v10, {KVIMG}, v10")
        a(f"v_add_u32 v11, {KVIMG}, v11")
        if ACC: a(f"s_add_u32 s{sB}, s{sB}, {ACC}")
        a(f"s_lshl_b32 s{sC}, s{sRB}, 2")
        a(f"s_add_u32 s{sC}, s{sC}, s{sCW}")
        a(f"s_lshl_b32 s{sC}, s{sC}, 3")
        a(f"s_add_u32 s{sC}, s{sC}, s{sG}")
        a(f"s_mul_i32 s{sC}, s{sC}, 5120")
        a(f"s_add_u32 s{sC}, s{sC}, {OB}")
        a(f"s_lshl_b32 s{sD}, s{sP}, 9")
        a(f"s_add_u32 s{sD}, s{sD}, s{sC}")
        a(f"s_add_u32 s{sD}, s{sD}, 4096")
        a(f"s_lshl_b32 s{sE}, s{sP}, 11")
        a(f"s_add_u32 s{sC}, s{sC}, s{sE}")
        a("v_lshlrev_b32 v12, 4, v1")
        a("v_lshlrev_b32 v13, 3, v1")
        S = a.label("NOKVPOLL")
        a(f"s_cmp_eq_u32 s{sWAVE}, 0")
        a(f"s_cbranch_scc0 {S}")
        a(f"s_lshl_b32 s{sA}, s{sG}, 8")
        a(f"s_add_u32 s{sA}, s{sA}, {KVC}")
        self.poll(sWS, f"s{sA}", 16, "kv")
        a(f"{S}:")
        a("s_barrier")
        self.st(5)
        a(f"buffer_load_dwordx4 v[16:19], v6, {sr(sWS)}, s{sB} offen sc1")
        a(f"buffer_load_dwordx4 v[20:23], v7, {sr(sWS)}, s{sB} offen sc1")
        a("s_waitcnt vmcnt(1)")
        a("v_cvt_pk_bf16_f32 v16, v16, v17")
        a("v_cvt_pk_bf16_f32 v17, v18, v19")
        a("ds_write_b64 v8, v[16:17]")
        a("s_waitcnt vmcnt(0)")
        a("v_cvt_pk_bf16_f32 v20, v20, v21")
        a("v_cvt_pk_bf16_f32 v21, v22, v23")
        a("v_cmp_gt_u32 vcc, 328, v0")
        a(f"s_and_saveexec_b64 s[{sEX}:{sEX+1}], vcc")
        a("ds_write_b64 v8, v[20:21] offset:4096")
        a(f"s_mov_b64 exec, s[{sEX}:{sEX+1}]")
        a("s_waitcnt lgkmcnt(0)")
        a("s_barrier")
        FA, FB, TA, TB = 24, 44, 64, 80
        for kk in range(5): a(f"ds_read_b128 {vr(FB+4*kk,4)}, v11 offset:{16*kk}")
        for kk in range(5): a(f"ds_read_b128 {vr(FA+4*kk,4)}, v10 offset:{16*kk}")
        for kk in range(5):
            a(f"s_waitcnt lgkmcnt({9-kk})")
            a(f"v_mfma_f32_32x32x16_bf16 {vr(TB,16)}, {vr(FB+4*kk,4)}, {vr(PF+4*kk,4)}, {'0' if kk == 0 else vr(TB,16)}")
        for kk in range(5):
            a(f"s_waitcnt lgkmcnt({4-kk})")
            a(f"v_mfma_f32_32x32x16_bf16 {vr(TA,16)}, {vr(FA+4*kk,4)}, {vr(PF+4*kk,4)}, {'0' if kk == 0 else vr(TA,16)}")
        a("s_nop 2")
        a(f"v_add_f32 v14, {f32(1e-6)}, v{TB+4}")
        a("v_rcp_f32 v14, v14")
        a("s_nop 0")
        for i in range(4): a(f"v_mul_f32 v{TB+i}, v14, v{TB+i}")
        a(f"v_cvt_pk_bf16_f32 v104, v{TB}, v{TB+1}")
        a(f"v_cvt_pk_bf16_f32 v105, v{TB+2}, v{TB+3}")
        a(f"buffer_store_dwordx2 v[104:105], v13, {sr(sWS)}, s{sD} offen sc1")
        a("s_nop 0")
        for b in range(2):
            for i in range(8): a(f"v_mul_f32 v{TA+8*b+i}, v14, v{TA+8*b+i}")
            for i in range(4): a(f"v_cvt_pk_bf16_f32 v{96+4*b+i}, v{TA+8*b+2*i}, v{TA+8*b+2*i+1}")
            a(f"buffer_store_dwordx4 {vr(96+4*b,4)}, v12, {sr(sWS)}, s{sC} offen offset:{1024*b} sc1")
        self.st(6)
        a("s_waitcnt vmcnt(0)")
        a("s_barrier")
        S = a.label("NOOSIG")
        a(f"s_cmp_eq_u32 s{sWAVE}, 0")
        a(f"s_cbranch_scc0 {S}")
        a(f"s_lshl_b32 s{sA}, s{sRB}, 8")
        a(f"s_add_u32 s{sA}, s{sA}, {OC}")
        self.signal(sWS, f"s{sA}")
        a(f"{S}:")

    def final(self):
        a = self.a
        a("v_lshrrev_b32 v2, 5, v1")
        a("v_bfe_u32 v3, v1, 4, 1")
        a("v_and_b32 v9, 15, v1")
        a("v_lshlrev_b32 v4, 10, v2")
        a("v_lshl_add_u32 v4, v3, 9, v4")
        a("v_lshl_add_u32 v4, v9, 4, v4")
        a("v_mul_u32_u24 v5, 5120, v2")
        a("v_lshl_add_u32 v5, v3, 8, v5")
        a("v_lshl_add_u32 v5, v9, 3, v5")
        a("v_bfe_u32 v10, v1, 2, 2")
        a("v_and_b32 v11, 3, v1")
        a("v_mul_u32_u24 v12, 20, v3")
        a("v_add_u32 v12, v12, v10")
        a("v_lshl_add_u32 v6, v2, 3, v12")
        a("v_mul_u32_u24 v6, 160, v6")
        a("v_lshl_add_u32 v6, v11, 3, v6")
        a("v_mul_u32_u24 v7, 80, v2")
        a("v_add3_u32 v7, v7, v12, 16")
        a("v_mul_u32_u24 v7, 160, v7")
        a("v_lshl_add_u32 v7, v11, 3, v7")
        a(f"s_mul_i32 s{sA}, s{sP}, 51200")
        a(f"s_add_u32 s{sA}, s{sA}, {WOIMG}")
        a(f"v_add_u32 v6, s{sA}, v6")
        a(f"v_add_u32 v7, s{sA}, v7")
        a(f"s_and_b32 s{sA}, s{sJ}, 3")
        a(f"s_lshl_b32 s{sB}, s{sXCD}, 2")
        a(f"s_add_u32 s{sA}, s{sA}, s{sB}")
        a(f"s_lshr_b32 s{sF}, s{sA}, 1")
        a(f"s_lshl_b32 s{sB}, s{sA}, 1")
        a(f"s_lshr_b32 s{sC}, s{sCW}, 1")
        a(f"s_add_u32 s{sB}, s{sB}, s{sC}")
        a(f"s_lshl_b32 s{sB}, s{sB}, 1")
        a(f"s_add_u32 s{sB}, s{sB}, s{sP}")
        a(f"s_mul_i32 s{sB}, s{sB}, {4*5120}")
        a(f"s_add_u32 s{sB}, s{sB}, {OB}")
        a(f"s_and_b32 s{sC}, s{sCW}, 1")
        a(f"s_lshl_b32 s{sD}, s{sC}, 7")
        a(f"s_add_u32 s{sD}, s{sD}, s{sB}")
        a(f"s_add_u32 s{sD}, s{sD}, 4096")
        a(f"s_lshl_b32 s{sC}, s{sC}, 8")
        a(f"s_add_u32 s{sB}, s{sB}, s{sC}")
        a(f"s_lshl_b32 s{sA}, s{sA}, 2")
        a(f"s_add_u32 s{sA}, s{sA}, s{sCW}")
        a(f"s_mul_i32 s{sA}, s{sA}, {16*2560}")
        a(f"s_lshr_b32 s{sC}, s{sJ}, 2")
        a(f"s_mul_i32 s{sC}, s{sC}, 160")
        a(f"s_add_u32 s{sE}, s{sA}, s{sC}")
        a("v_mul_u32_u24 v8, 2560, v9")
        a("v_lshrrev_b32 v2, 4, v1")
        a("v_lshl_add_u32 v8, v2, 3, v8")
        a(f"s_mul_i32 s{sA}, s{sCW}, 5120")
        a(f"s_add_u32 s{sA}, s{sA}, {RED}")
        a(f"v_lshl_add_u32 v14, v1, 4, s{sA}")
        S = a.label("NOOPOLL")
        a(f"s_cmp_eq_u32 s{sWAVE}, 0")
        a(f"s_cbranch_scc0 {S}")
        a(f"s_lshl_b32 s{sA}, s{sF}, 8")
        a(f"s_add_u32 s{sA}, s{sA}, {OC}")
        self.poll(sWS, f"s{sA}", 8, "o")
        a(f"{S}:")
        a("s_waitcnt vmcnt(0) lgkmcnt(0)")
        a("s_barrier")
        self.st(8)
        O, AC = 16, 56
        FR = [76, 96]
        steps = []
        n = 0
        for gl in range(4):
            if gl: a(f"s_add_u32 s{sB}, s{sB}, 5120")
            for p in range(2):
                a(f"buffer_load_dwordx4 {vr(O+4*n,4)}, v4, {sr(sWS)}, s{sB} offen offset:{2048*p} sc1")
                steps.append((O + 4 * n, 6, gl * 12800 + p * 6400, 640, 1)); n += 1
        for gp in range(2):
            if gp: a(f"s_add_u32 s{sD}, s{sD}, 10240")
            for j in range(2):
                a(f"buffer_load_dwordx2 {vr(O+4*n+2*j,2)}, v5, {sr(sWS)}, s{sD} offen offset:{512*j} sc1")
            steps.append((O + 4 * n, 7, gp * 25600, 6400, 2)); n += 1
        def rd(k):
            _, ad, off, js, _ = steps[k]
            return [f"ds_read_b64_tr_b16 {vr(FR[k&1]+4*t+2*j,2)}, v{ad} offset:{off+js*j+32*t}" for t in range(5) for j in range(2)]
        for s in rd(0): a(s)
        total = 12; done = 0
        for k in range(10):
            done += steps[k][4]
            a(f"s_waitcnt vmcnt({total-done})")
            nx = rd(k + 1) if k < 9 else []
            new = 0
            for t in range(5):
                a(f"s_waitcnt lgkmcnt({10 - 2*(t+1) + new})")
                a(f"v_mfma_f32_16x16x32_bf16 {vr(AC+4*t,4)}, {vr(FR[k&1]+4*t,4)}, {vr(steps[k][0],4)}, {'0' if k == 0 else vr(AC+4*t,4)}")
                for q in range(2):
                    if nx: a(nx.pop(0)); new += 1
        self.st(9)
        Z = a.label("FINLO")
        a(f"s_cmp_eq_u32 s{sP}, 0")
        a(f"s_cbranch_scc1 {Z}")
        a("s_nop 5")
        for t in range(5): a(f"ds_write_b128 v14, {vr(AC+4*t,4)} offset:{1024*t}")
        a("s_waitcnt lgkmcnt(0)")
        a("s_barrier")
        a("s_branch L_FINI")
        a(f"{Z}:")
        a("s_barrier")
        for t in range(5): a(f"ds_read_b128 {vr(76+4*t,4)}, v14 offset:{1024*t}")
        for t in range(5):
            a(f"s_waitcnt lgkmcnt({4-t})")
            for i in range(4): a(f"v_add_f32 v{AC+4*t+i}, v{AC+4*t+i}, v{76+4*t+i}")
            a(f"v_cvt_pk_bf16_f32 v{96+2*t}, v{AC+4*t}, v{AC+4*t+1}")
            a(f"v_cvt_pk_bf16_f32 v{97+2*t}, v{AC+4*t+2}, v{AC+4*t+3}")
            a(f"buffer_store_dwordx2 {vr(96+2*t,2)}, v8, {sr(sOUT)}, s{sE} offen offset:{32*t}")
        a("L_FINI:")

    def b1_unit(self):
        a = self.a
        a(f"s_sub_u32 s{sA}, s2, 128")
        a(f"s_mul_i32 s{sB}, s{sA}, 205")
        a(f"s_lshr_b32 s{sB}, s{sB}, 10")
        for u in range(80): assert (u * 205) >> 10 == u // 5
        a(f"s_mul_i32 s{sC}, s{sB}, 5")
        a(f"s_sub_u32 s{sC}, s{sA}, s{sC}")
    def b1_issue(self):
        a = self.a
        self.b1_unit()
        a("v_lshrrev_b32 v2, 4, v1")
        a("v_and_b32 v3, 15, v1")
        a("v_lshlrev_b32 v9, 2, v2")
        a("v_xor_b32 v3, v3, v9")
        a(f"v_mul_u32_u24 v2, {16*1280}, v2")
        a("v_lshl_add_u32 v4, v3, 4, v2")
        for i in range(1, 4): a(f"v_add_u32 v{4+i}, {i*(81920-1024)}, v4")
        a(f"s_lshl_b32 s{sD}, s{sCW}, 9")
        a(f"s_add_u32 s{sD}, s{sD}, s{sB}")
        a(f"s_mul_i32 s{sD}, s{sD}, 1280")
        a(f"s_lshl_b32 s{sE}, s{sC}, 8")
        a(f"s_add_u32 s{sD}, s{sD}, s{sE}")
        a(f"s_lshl_b32 s{sE}, s{sCW}, 13")
        a(f"s_add_u32 m0, s{sE}, {XBIMG}")
        a("s_nop 0")
        for hf in range(2):
            if hf:
                a("s_add_u32 m0, m0, 4096")
                a(f"s_add_u32 s{sD}, s{sD}, {4*81920}")
            for i in range(4):
                a(f"buffer_load_dwordx4 v{4+i}, {sr(sBX)}, s{sD} offen offset:{1024*i} lds")
    def b1_main(self):
        a = self.a
        AF = 16
        self.b1_unit()
        a("v_bfe_u32 v2, v1, 1, 4")
        a(f"s_lshl_b32 s{sD}, s{sCW}, 4")
        a(f"v_add_u32 v2, s{sD}, v2")
        a("v_and_b32 v3, 1, v1")
        a(f"v_mul_u32_u24 v9, s{sB}, v2")
        a("v_lshl_add_u32 v9, v3, 9, v9")
        a("v_lshl_add_u32 v10, v2, 1, v3")
        a("v_cmp_eq_u32 vcc, 1, v10")
        a("v_mov_b32 v11, 64")
        a("v_lshrrev_b32 v12, 5, v1")
        a("v_cndmask_b32 v2, v2, v11, vcc")
        a("v_cndmask_b32 v9, v9, 0, vcc")
        a("v_lshlrev_b32 v12, 7, v12")
        a("v_mul_u32_u24 v12, v2, v12")
        a("v_add_u32 v9, v9, v12")
        a("v_and_b32 v9, 2047, v9")
        a("v_cvt_f32_u32 v9, v9")
        a("v_cvt_f32_u32 v2, v2")
        a(f"v_mul_f32 v48, {f32(1/2048)}, v9")
        a(f"v_mul_f32 v2, {f32(1/128)}, v2")
        a(f"v_mul_f32 v3, {f32(16.0)}, v2")
        for e in range(1, 8): a(f"v_add_f32 v{48+e}, v{47+e}, v2")
        a("v_cos_f32 v4, v3")
        for e in range(8): a(f"v_add_f32 v{56+e}, v{48+e}, v3")
        a("v_add_f32 v4, v4, v4")
        a("v_mov_b32 v5, v4")
        for e in range(16): a(f"v_cos_f32 v{48+e}, v{48+e}")
        for ks in range(8):
            cur = 48 + 8 * (ks & 1)
            if ks >= 2:
                oth = 48 + 8 * ((ks + 1) & 1)
                for e in range(0, 8, 2):
                    a(f"v_pk_fma_f32 {vr(cur+e,2)}, v[4:5], {vr(oth+e,2)}, {vr(cur+e,2)} neg_lo:[0,0,1] neg_hi:[0,0,1]")
            for e in range(0, 8, 2): a(f"v_cvt_pk_bf16_f32 v{AF+4*ks+e//2}, v{cur+e}, v{cur+e+1}")
        self.trlane(10, 11, 12, 9)
        a("v_lshl_add_u32 v13, v9, 3, v11")
        a("v_lshlrev_b32 v13, 8, v13")
        a("v_lshl_add_u32 v13, v10, 5, v13")
        a("v_lshl_add_u32 v13, v12, 3, v13")
        a("v_lshl_add_u32 v13, v11, 6, v13")
        for nb in range(4):
            t = 4 + nb
            if nb: a(f"v_xor_b32 v{t}, {64*nb}, v13")
            a(f"v_add_u32 v{t}, {XBIMG}, v{t if nb else 13}")
        a("v_and_b32 v2, 31, v1")
        a("v_lshlrev_b32 v8, 2, v2")
        a("v_lshl_add_u32 v8, v9, 10, v8")
        a(f"s_lshl_b32 s{sD}, s{sCW}, 13")
        a(f"s_add_u32 s{sD}, s{sD}, {STG}")
        a(f"v_add_u32 v8, s{sD}, v8")
        self.fs("pb1", 2)
        a("s_barrier")
        self.fs("pb1", 3)
        D, XF = 48, 112
        order = [(nb, ks) for nb in range(4) for ks in range(8)]
        def rd(k):
            nb, ks = order[k]
            for j in range(2):
                a(f"ds_read_b64_tr_b16 {vr(XF+4*(k%8)+2*j,2)}, v{4+nb} offset:{(16*ks+4*j)*256}")
        stores = []
        def mk(nb):
            for j in range(4):
                for ii in range(2):
                    t = 200 + 2 * j + ii
                    stores.append([f"v_cvt_pk_bf16_f32 v{t}, v{D+16*nb+4*j+2*ii}, v{D+16*nb+4*j+2*ii+1}",
                                   f"ds_write_b32 v8, v{t} offset:{(4*j+ii)*512 + nb*128}"])
        for k in range(6): rd(k)
        nw = 0
        hist = []
        for k in range(32):
            nb, ks = order[k]
            a(f"s_waitcnt lgkmcnt({min(15, 2*min(5, 31-k) + sum(hist[-6:]))})")
            a(f"v_mfma_f32_32x32x16_bf16 {vr(D+16*nb,16)}, {vr(AF+4*ks,4)}, {vr(XF+4*(k%8),4)}, {'0' if ks == 0 else vr(D+16*nb,16)}")
            if k + 6 < 32: rd(k + 6)
            if ks == 3 and nb: mk(nb - 1)
            if stores:
                for i in stores.pop(0): a(i)
                hist.append(1)
            else: hist.append(0)
        self.fs("pb1", 4)
        mk(3)
        a("s_nop 3")
        for g_ in stores:
            for i in g_: a(i)
        a("s_waitcnt lgkmcnt(0)")
    def b1_store(self):
        a = self.a
        a(f"v_lshl_add_u32 v2, v1, 4, s{sD}")
        for i in range(8): a(f"ds_read_b128 {vr(16+4*i,4)}, v2 offset:{1024*i}")
        a("v_lshrrev_b32 v3, 5, v1")
        a("v_mul_u32_u24 v3, 40960, v3")
        a("v_bfe_u32 v4, v1, 3, 2")
        a("v_lshl_add_u32 v3, v4, 11, v3")
        a("v_and_b32 v4, 7, v1")
        a("v_lshl_add_u32 v3, v4, 4, v3")
        a(f"s_mul_i32 s{sD}, s{sCW}, {16*40960}")
        a(f"s_lshl_b32 s{sC}, s{sC}, 13")
        a(f"s_add_u32 s{sD}, s{sD}, s{sC}")
        a(f"s_lshl_b32 s{sB}, s{sB}, 7")
        a(f"s_add_u32 s{sD}, s{sD}, s{sB}")
        a(f"s_add_u32 s{sD}, s{sD}, {UB}")
        for i in range(8):
            a(f"s_waitcnt lgkmcnt({7-i})")
            a(f"buffer_store_dwordx4 {vr(16+4*i,4)}, v3, {sr(sWS)}, s{sD} offen sc1")
            if i < 7: a(f"s_add_u32 s{sD}, s{sD}, {2*40960}")

    def b2_prep(self, extra):
        a = self.a
        self.b2_params(extra)
        self.tables_make()
        S = a.label("NOB1")
        a(f"s_cmp_eq_u32 s{sWAVE}, 4")
        a(f"s_cbranch_scc0 {S}")
        a(f"s_movk_i32 s{sT4}, 128")
        self.poll(sDBG, f"s{sT4}", NB1, "b1")
        a(f"{S}:")
    def b2_params(self, extra):
        a = self.a
        if extra:
            for r, v in ((sA, 0), (sB, 8), (sC, 0), (sD, "1.0"), (sE, 0), (sF, f32(0.25)), (sROT, 0), (sWROW, 1), ):
                a(f"s_mov_b32 s{r}, {v}")
            return
        a(f"s_lshl_b32 s{sA}, s{sXCD}, 3")
        a(f"s_lshr_b32 s{sB}, s{sJL}, 1")
        a(f"s_add_u32 s{sA}, s{sA}, s{sB}")
        a(f"s_and_b32 s{sB}, s{sJL}, 1")
        a(f"s_lshl_b32 s{sB}, s{sB}, 3")
        a(f"s_mov_b32 s{sWROW}, 8")
        a("s_cmp_eq_u32 s2, 0")
        a(f"s_cselect_b32 s{sE}, 0, 1.0")
        a("s_cmp_eq_u32 s2, 8")
        a(f"s_cselect_b32 s{sROT}, 64, s{sA}")
        a(f"s_cselect_b32 s{sB}, 0, s{sB}")
        a(f"s_cselect_b32 s{sC}, 64, 0")
        a(f"s_cselect_b32 s{sD}, 0, 1.0")
        a(f"s_cselect_b32 s{sF}, 0, {f32(0.25)}")
    def tables_chunks(self):
        R = 16
        def f20(tile):
            o = ["v_lshrrev_b32 v40, 5, v1", "v_bfe_u32 v5, v1, 2, 1", "v_mul_u32_u24 v5, 10, v5", "v_bfe_u32 v6, v1, 1, 1", "v_add_u32 v5, v5, v6"]
            if tile == 0: o += ["v_bfe_u32 v6, v1, 3, 2", "v_lshl_add_u32 v6, v6, 1, v5"]
            else: o += ["v_add_u32 v6, 8, v5"]
            o += ["v_cvt_f32_u32 v6, v6", f"v_mul_f32 v41, {f32(0.05)}, v6", "v_and_b32 v5, 1, v1", "v_cvt_f32_u32 v5, v5", f"v_mul_f32 v42, {f32(0.25)}, v5"]
            blocks = [o]
            for ks in range(3):
                for jj in range(2):
                    k0 = 4 * ks + jj; k1 = k0 + 2
                    par = lambda kc: (4.0 * (kc % 5), 0.25 if kc >= 5 else 0.0)
                    d0, c0 = par(k0); d1, c1 = par(k1)
                    o = ["v_cmp_eq_u32 vcc, 0, v40", f"v_mov_b32 v12, {f32(d1)}", f"v_mov_b32 v13, {f32(d0)}", "v_cndmask_b32 v12, v12, v13, vcc",
                         f"v_mov_b32 v13, {f32(c1)}", f"v_mov_b32 v10, {f32(c0)}", "v_cndmask_b32 v13, v13, v10, vcc",
                         "v_sub_f32 v13, v42, v13", "v_fma_f32 v10, v41, v12, v13"]
                    for e in range(0, 4, 2):
                        dst = R + 4 * ks + 2 * jj + e // 2
                        o += ["v_add_f32 v11, v10, v41", "v_cos_f32 v12, v10", "v_cos_f32 v13, v11",
                              "v_add_f32 v10, v11, v41" if e == 0 else "s_nop 0", f"v_cvt_pk_bf16_f32 v{dst}, v12, v13"]
                        if k1 >= 10: o += [f"v_cndmask_b32 v{dst}, 0, v{dst}, vcc"]
                    blocks.append(o)
            return blocks
        def m2():
            blocks = [["v_bfe_u32 v3, v1, 1, 3", f"v_add_u32 v3, s{sB}, v3", f"v_lshl_add_u32 v3, v3, 7, s{sC}", "v_cvt_f32_u32 v3, v3",
                       f"v_mul_f32 v43, {f32(1/2048)}, v3", "v_lshlrev_b32 v6, 2, v40", "v_cvt_f32_u32 v6, v6", "v_fma_f32 v44, v43, v6, v42"]]
            for ks in range(2):
                for e4 in range(4):
                    blocks.append([f"s_mov_b32 s{sT3}, {f32(float(8*ks+e4))}", f"v_fma_f32 v10, v43, s{sT3}, v44", f"v_subrev_f32 v11, s{sF}, v10",
                                   "v_cos_f32 v10, v10", "v_cos_f32 v11, v11", "s_nop 0", f"v_mul_f32 v10, s{sD}, v10", f"v_mul_f32 v11, s{sE}, v11",
                                   f"v_cvt_pk_bf16_f32 v{R+12+4*ks+e4}, v10, v11"])
            return blocks
        def f32t():
            blocks = [["v_and_b32 v2, 31, v1", "v_lshrrev_b32 v40, 5, v1", "v_cvt_f32_u32 v5, v2", f"v_mul_f32 v41, {f32(1/32)}, v5",
                       "v_lshlrev_b32 v6, 2, v40", "v_cvt_f32_u32 v6, v6", "v_mul_f32 v42, v41, v6"]]
            for ks in range(4):
                for q in range(4):
                    blocks.append([f"s_mov_b32 s{sT3}, {f32(float(8*ks+q))}", f"v_fma_f32 v10, v41, s{sT3}, v42", "v_cos_f32 v11, v10",
                                   "v_sin_f32 v12, v10", "s_nop 0", f"v_cvt_pk_bf16_f32 v{R+4*ks+q}, v11, v12"])
            return blocks
        def tw():
            blocks = [["v_and_b32 v2, 31, v1", "v_lshrrev_b32 v40, 5, v1", "v_cvt_f32_u32 v5, v2", f"v_mul_f32 v41, {f32(1/640)}, v5",
                       "v_mul_u32_u24 v6, 10, v40", "v_cvt_f32_u32 v6, v6", "v_mul_f32 v42, v41, v6"]]
            for q in range(11):
                o = [f"s_mov_b32 s{sT3}, {f32(float(q))}", f"v_fma_f32 v10, v41, s{sT3}, v42"] if q < 10 else [f"v_mul_f32 v10, {f32(20.0)}, v41"]
                blocks.append(o + [f"v_cos_f32 v{R+2*q}, v10", f"v_sin_f32 v{R+2*q+1}, v10"])
            return blocks
        pre = [["v_lshrrev_b32 v40, 5, v1", "v_and_b32 v5, 1, v1", "v_cvt_f32_u32 v5, v5", f"v_mul_f32 v42, {f32(0.25)}, v5"]]
        cat = lambda bl: sum(bl, [])
        A_, B_, C_, D_ = f20(0), f20(1), f32t(), tw()
        return [(cat(A_[0:5]), [(16, 0), (20, 1)]),
                (cat(A_[0:1] + A_[5:7]) + cat(B_[0:3]).copy(), None),
                (cat(B_[0:1] + B_[3:7]), [(20, 4), (24, 5)]),
                (cat(pre + m2()), [(28, 16), (32, 17)]),
                (cat(C_[0:9]), [(16, 6), (20, 7)]),
                (cat(C_[0:1] + C_[9:17]), [(24, 8), (28, 9)]),
                (cat(D_[0:7]), [(16, 10), (20, 11), (24, 12)]),
                (cat(D_[0:1] + D_[7:12]), [(28, 13), (32, 14), (36, 15)])]
    def tables_make(self):
        a = self.a
        E = a.label("TMKE")
        v = self.tables_chunks()
        v[1] = (v[1][0], [(24, 2), (16, 3)])
        a("v_lshlrev_b32 v15, 4, v1")
        a(f"v_add_u32 v15, {TAB}, v15")
        labs = [a.label("TMK") for _ in range(8)]
        def tree(lo, hi):
            if hi - lo == 1:
                code, rg = v[lo]
                for i in code: a(i)
                a("s_nop 0")
                for r, g_ in rg: a(f"ds_write_b128 v15, {vr(r,4)} offset:{1024*g_}")
                if lo < 7: a(f"s_branch {E}")
                return
            mid = (lo + hi) // 2
            a(f"s_cmp_ge_u32 s{sWAVE}, {mid}")
            a(f"s_cbranch_scc1 {labs[mid]}")
            tree(lo, mid)
            a(f"{labs[mid]}:")
            tree(mid, hi)
        tree(0, 8)
        a(f"{E}:")

    def b2(self):
        a = self.a
        UD = 16
        F20, F32, TW, M2 = 40, 64, 80, 104
        self.fs("pb2", 1)
        a("v_and_b32 v2, 31, v1")
        a("v_lshrrev_b32 v9, 5, v1")
        a("v_lshlrev_b32 v3, 4, v1")
        a(f"s_mul_i32 s{sT2}, s{sA}, 40960")
        a(f"s_lshl_b32 s{sT3}, s{sWAVE}, 11")
        a(f"s_add_u32 s{sT2}, s{sT2}, s{sT3}")
        a(f"s_add_u32 s{sT2}, s{sT2}, {UB}")
        US = 112
        for tl in range(3):
            if tl == 2:
                a(f"s_cmp_lt_u32 s{sWAVE}, 4")
                a(f"s_cselect_b32 s{sT3}, {8*2048}, 0")
                a(f"s_add_u32 s{sT2}, s{sT2}, s{sT3}")
            elif tl == 1:
                a(f"s_add_u32 s{sT2}, s{sT2}, {8*2048}")
            for hh in range(2):
                a(f"buffer_load_dwordx4 {vr(US+8*tl+4*hh,4)}, v3, {sr(sWS)}, s{sT2} offen offset:{1024*hh} sc1")
        a(f"s_mul_i32 s{sT3}, s{sWAVE}, 6144")
        a(f"s_add_u32 s{sT3}, s{sT3}, {UST_KV}")
        a(f"v_add_u32 v15, s{sT3}, v3")
        a("v_lshlrev_b32 v4, 2, v2")
        a("v_lshl_add_u32 v4, v9, 9, v4")
        a(f"v_add_u32 v4, s{sT3}, v4")
        a(f"v_add_u32 v3, {TAB}, v3")
        for g_ in range(18):
            if g_ == 15: a("s_waitcnt lgkmcnt(8)")
            a(f"ds_read_b128 {vr(F20+4*g_,4)}, v3 offset:{1024*g_}")
        a(f"v_mul_u32_u24 v5, {ZS}, v2")
        a("v_lshl_add_u32 v5, v9, 3, v5")
        a(f"s_lshl_b32 s{sT3}, s{sWAVE}, 6")
        a(f"s_add_u32 s{sT3}, s{sT3}, {ZIMG}")
        a(f"v_add_u32 v5, s{sT3}, v5")
        self.trlane(10, 11, 12, 9)
        a("v_lshlrev_b32 v11, 6, v11")
        a("v_lshl_add_u32 v11, v10, 5, v11")
        a("v_lshl_add_u32 v11, v12, 3, v11")
        a(f"s_mul_i32 s{sT3}, s{sWAVE}, {2*ZS}")
        a(f"s_add_u32 s{sT3}, s{sT3}, {ZIMG}")
        a(f"v_add_u32 v11, s{sT3}, v11")
        a("v_lshl_add_u32 v6, v9, 9, v11")
        a(f"v_mul_u32_u24 v7, {512 + ZS - 1280}, v9")
        a("v_add_u32 v7, v7, v11")
        a(f"s_mul_i32 s{sT3}, s{sWAVE}, {VBW}")
        a(f"s_add_u32 s{sT3}, s{sT3}, {VB}")
        a(f"v_mul_u32_u24 v8, {10*VBS}, v9")
        a("v_lshl_add_u32 v8, v2, 2, v8")
        a(f"v_add_u32 v8, s{sT3}, v8")
        a("v_bfe_u32 v12, v1, 3, 2")
        a("v_and_b32 v13, 3, v1")
        a("v_lshl_add_u32 v12, v12, 2, v13")
        a("v_min_u32 v12, 10, v12")
        a("v_bfe_u32 v13, v1, 2, 1")
        a("v_mul_u32_u24 v13, 10, v13")
        a("v_add_u32 v12, v12, v13")
        a(f"v_mul_u32_u24 v12, {VBS}, v12")
        a("v_lshl_add_u32 v12, v9, 4, v12")
        a(f"v_add_u32 v12, s{sT3}, v12")
        a("v_mul_u32_u24 v13, 40, v2")
        a("v_mul_u32_u24 v14, 20, v9")
        a("v_add_u32 v13, v13, v14")
        a(f"v_sub_u32 v14, {1280+1260}, v13")
        a("v_add_u32 v13, 1280, v13")
        a("s_waitcnt lgkmcnt(0)")
        self.fs("pb2", 2)
        for tl in range(3):
            a(f"s_waitcnt vmcnt({2*(2-tl)})")
            for hh in range(2):
                a(f"ds_write_b128 v15, {vr(US+8*tl+4*hh,4)} offset:{2048*tl+1024*hh}")
        self.fs("pb2", 3)
        for tl in range(3):
            a(f"s_waitcnt lgkmcnt({[4, 6, 7][tl]})")
            for ks in range(2):
                for e4 in range(4):
                    a(f"ds_read_b32 v{UD+8*tl+4*ks+e4}, v4 offset:{2048*tl+1024*ks+128*e4}")
        DA = [136, 152, 168]
        for tl in range(3):
            for ks in range(2):
                a(f"s_waitcnt lgkmcnt({min(15, 20-8*tl-4*ks)})")
                a(f"v_mfma_f32_32x32x16_bf16 {vr(DA[tl],16)}, {vr(UD+8*tl+4*ks,4)}, {vr(M2+4*ks,4)}, {'0' if ks == 0 else vr(DA[tl],16)}")
        self.fs("pb2", 4)
        a("s_nop 4")
        a(f"s_mov_b32 s{sEX}, 0xffff")
        a(f"s_mov_b32 s{sEX+1}, 0xffff")
        a(f"s_mov_b64 exec, s[{sEX}:{sEX+1}]")
        E = a.label("ZDONE")
        for tl in range(3):
            if tl == 2:
                a(f"s_cmp_ge_u32 s{sWAVE}, 4")
                a(f"s_cbranch_scc1 {E}")
            for j in range(4):
                t = 112 + 8 * tl + 2 * j
                a(f"v_cvt_pk_bf16_f32 v{t}, v{DA[tl]+4*j}, v{DA[tl]+4*j+1}")
                a(f"v_cvt_pk_bf16_f32 v{t+1}, v{DA[tl]+4*j+2}, v{DA[tl]+4*j+3}")
                a(f"ds_write_b64 v5, {vr(t,2)} offset:{512*tl+16*j}")
        a(f"{E}:")
        a("s_mov_b64 exec, -1")
        a("s_waitcnt lgkmcnt(0)")
        a("s_barrier")
        self.fs("pb2", 5)
        ZF = 16
        self.b2_after_z()
        pad = ZS - 1280
        a(f"ds_read_b64_tr_b16 {vr(ZF,2)}, v6")
        a(f"ds_read_b64_tr_b16 {vr(ZF+2,2)}, v6 offset:256")
        a(f"ds_read_b64_tr_b16 {vr(ZF+4,2)}, v7 offset:1024")
        a(f"ds_read_b64_tr_b16 {vr(ZF+6,2)}, v6 offset:{1280+pad}")
        a(f"ds_read_b64_tr_b16 {vr(ZF+8,2)}, v11 offset:{2048+pad}")
        a(f"ds_read_b64_tr_b16 {vr(ZF+10,2)}, v11 offset:{2304+pad}")
        DB = 112
        a(f"s_add_u32 s{sT2}, s{sB}, s{sWAVE}")
        a(f"s_lshl_b32 s{sT2}, s{sT2}, 7")
        a(f"s_add_u32 s{sT2}, s{sT2}, s{sROT}")
        a(f"s_sub_u32 s{sT3}, 2048, s{sT2}")
        a(f"s_and_b32 s{sT3}, s{sT3}, 2047")
        a(f"s_mul_i32 s{sT2}, s{sT2}, 2560")
        a(f"s_mul_i32 s{sT3}, s{sT3}, 2560")
        for ks in range(3):
            a(f"s_waitcnt lgkmcnt({4-2*ks})")
            for tl in range(2):
                a(f"v_mfma_f32_32x32x16_bf16 {vr(DB+16*tl,16)}, {vr(F20+12*tl+4*ks,4)}, {vr(ZF+4*ks,4)}, {'0' if ks == 0 else vr(DB+16*tl,16)}")
        a("s_nop 7")
        a("s_nop 3")
        for q in list(range(10)) + [10]:
            src = DB + 2 * q if q < 10 else DB
            cw, sw = TW + 2 * q, TW + 2 * q + 1
            t = 160 + 3 * q
            a(f"v_mul_f32 v{t}, v{src}, v{cw}")
            a(f"v_mul_f32 v{t+1}, v{src+1}, v{cw}")
            a(f"v_fma_f32 v{t}, v{src+1}, v{sw}, v{t}")
            a(f"v_fma_f32 v{t+1}, -v{src}, v{sw}, v{t+1}")
            a(f"v_cvt_pk_bf16_f32 v{t+2}, v{t}, v{t+1}")
            if q == 10:
                a("s_mov_b32 exec_hi, 0")
                a(f"ds_write_b32 v8, v{t+2} offset:{20*VBS}")
                a("s_mov_b64 exec, -1")
            else:
                a(f"ds_write_b32 v8, v{t+2} offset:{q*VBS}")
        a("s_waitcnt lgkmcnt(0)")
        self.fs("pb2", 6)
        for ks in range(4): a(f"ds_read_b128 {vr(16+4*ks,4)}, v12 offset:{32*ks}")
        DC = 112
        for ks in range(4):
            a(f"s_waitcnt lgkmcnt({3-ks})")
            a(f"v_mfma_f32_32x32x16_bf16 {vr(DC,16)}, {vr(16+4*ks,4)}, {vr(F32+4*ks,4)}, {'0' if ks == 0 else vr(DC,16)}")
        N = a.label("NOYST")
        a(f"s_cmp_ge_u32 s{sWAVE}, s{sWROW}")
        a(f"s_cbranch_scc1 {N}")
        a("s_nop 7")
        a("s_nop 1")
        for i in range(5): a(f"v_cvt_pk_bf16_f32 v{32+i}, v{DC+2*i}, v{DC+2*i+1}")
        for i in range(5): a(f"v_cvt_pk_bf16_f32 v{40+i}, v{DC+10-2*i}, v{DC+9-2*i}")
        self.fs("pb2", 7)
        a(f"buffer_store_dwordx4 v[32:35], v13, {sr(sOUT)}, s{sT2} offen")
        a(f"buffer_store_dword v36, v13, {sr(sOUT)}, s{sT2} offen offset:16")
        a(f"buffer_store_dwordx4 v[40:43], v14, {sr(sOUT)}, s{sT3} offen")
        a(f"buffer_store_dword v44, v14, {sr(sOUT)}, s{sT3} offen offset:16")
        a(f"{N}:")
        self.fs("pb2", 8)

    def b2_after_z(self):
        pass
    def codewarm(self):
        a = self.a
        E = a.label("NOCW")
        a(f"s_cmp_lg_u32 s{sWAVE}, 7")
        a(f"s_cbranch_scc1 {E}")
        a(f"s_cmp_ge_u32 s{sJL}, {10 + self.NCW}")
        a(f"s_cbranch_scc1 {E}")
        a(f"s_getpc_b64 s[{sT0}:{sT1}]")
        a("L_PCREF:")
        a(f"s_sub_u32 s{sT2}, s{sJL}, 10")
        a(f"s_lshl_b32 s{sT2}, s{sT2}, 13")
        a(f"v_lshl_add_u32 v252, v1, 7, s{sT2}")
        a(f"s_sub_u32 s{sT0}, s{sT0}, L_PCREF-L_TEXT0")
        a(f"s_subb_u32 s{sT1}, s{sT1}, 0")
        a(f"v_min_u32 v252, L_TEXTEND-L_TEXT0-4, v252")
        a(f"v_mov_b32 v253, s{sT1}")
        a(f"v_add_co_u32 v252, vcc, s{sT0}, v252")
        a("s_nop 1")
        a("v_addc_co_u32 v253, vcc, 0, v253, vcc")
        a("global_load_dword v251, v[252:253], off")
        a(f"{E}:")
    NCW = 5

    def build(self):
        a = self.a
        a("L_TEXT0:")
        self.entry()
        a(f"s_cmp_ge_u32 s{sJ}, 16")
        a("s_cbranch_scc1 L_QB")
        a(f"s_cmp_ge_u32 s{sWAVE}, 4")
        a("s_cbranch_scc0 L_KV_CP")
        self.loader_setup_x(True)
        self.kwait()
        self.fs("pst", 1)
        self.loader_issue(True, 0, mid=lambda: self.loader_setup_w(True))
        self.st(1)
        self.fs("pst", 3)
        self.kfinish()
        self.epi_setup(True)
        self.loader_issue(True, 1)
        self.fs("pst", 4)
        self.wphi_issue()
        self.loader_loop(True, extra=2)
        a("s_branch L_PHI")
        a("L_KV_CP:")
        self.compute_setup(True)
        self.epi_setup(True)
        self.kwait()
        self.kfinish()
        self.compute(True)
        a("s_branch L_PHI")
        a("L_QB:")
        self.kwait()
        self.kfinish()
        a(f"s_cmp_ge_u32 s{sWAVE}, 4")
        a("s_cbranch_scc0 L_QB_CP")
        npf = 0 if "nopf" in self.exp else 2
        a(f"s_cmp_ge_u32 s2, {128+NB1}")
        a("s_cbranch_scc1 L_ZL")
        self.b1_issue()
        if npf: self.l2warm(False)
        self.fs("pb1", 1)
        self.loader_setup(False)
        self.epi_setup(False)
        a(f"s_waitcnt vmcnt({npf})")
        a("s_barrier")
        a("s_branch L_ZL2")
        a("L_ZL:")
        if "nocw" not in self.exp: self.codewarm()
        if npf: self.l2warm(False)
        a("s_barrier")
        self.fs("pb1", 1)
        self.loader_setup(False)
        self.epi_setup(False)
        a("L_ZL2:")
        for sl in range(2): self.loader_issue(False, sl)
        self.fs("pb1", 5)
        self.wphi_issue()
        self.loader_loop(False, extra=2)
        a("s_branch L_PHI")
        a("L_QB_CP:")
        a(f"s_cmp_ge_u32 s2, {128+NB1}")
        a("s_cbranch_scc0 L_NOZ")
        for r in range(4, 8): a(f"v_mov_b32 v{r}, 0")
        a("v_lshlrev_b32 v2, 4, v0")
        a(f"s_sub_u32 s{sA}, s2, {128+NB1}")
        a(f"s_lshl_b32 s{sA}, s{sA}, 12")
        a(f"buffer_store_dwordx4 v[4:7], v2, {sr(sWS)}, s{sA} offen sc1")
        a("s_waitcnt vmcnt(0)")
        a("s_barrier")
        a(f"s_cmp_eq_u32 s{sWAVE}, 0")
        a("s_cbranch_scc0 L_NOISIG")
        self.signal(sDBG, "0")
        a("L_NOISIG:")
        self.fs("pb1", 1)
        if npf: self.l2warm(True)
        a("s_branch L_QSET")
        a("L_NOZ:")
        self.fs("pb1", 1)
        self.b1_main()
        self.b1_store()
        self.fs("pb1", 6)
        a("L_QSET:")
        self.epi_setup(False)
        self.compute_setup(False)
        self.st(3)
        self.compute(False)
        a("L_PHI:")
        self.phi()
        self.st(10)
        a(f"s_cmp_ge_u32 s{sJ}, 16")
        a("s_cbranch_scc1 L_QB2")
        self.kvpart()
        a("s_branch L_B2")
        a("L_QB2:")
        a("s_cmp_lg_u32 s2, 255")
        a("s_cbranch_scc1 L_OSTEP")
        self.b2_prep(True)
        a("s_waitcnt lgkmcnt(0)")
        a("s_barrier")
        a("L_B2:")
        self.b2()
        self.st(7)
        a(f"s_cmp_lt_u32 s{sJ}, 16")
        a("s_cbranch_scc1 L_WO1")
        a("s_barrier")
        a("L_OSTEP:")
        self.wo_dma(1)
        self.st(4)
        self.ostep()
        a("s_branch L_FINAL")
        a("L_WO1:")
        self.wo_dma(1)
        a("L_FINAL:")
        self.final()
        if self.stamps and self.dbgspan:
            self.st(11)
            a("s_waitcnt lgkmcnt(0)")
            a("v_mov_b32 v2, 0")
            a("s_mov_b64 exec, 1")
            a(f"s_and_b32 s{sA}, s{sWAVE}, 3")
            a(f"s_cmp_lg_u32 s{sA}, 0")
            a("s_cbranch_scc1 L_END")
            a(f"s_not_b32 s{ST0}, s{ST0}")
            for n, i in enumerate(self.dbgspan):
                a(f"v_mov_b32 v4, s{ST0+2*i}")
                a(f"buffer_atomic_umax v4, v2, {sr(sDBG)}, 0 offen offset:{4*(n+1)}")
        elif self.stretch is not None:
            self.st(11)
        elif self.stamps:
            self.st(11)
            a("s_waitcnt lgkmcnt(0)")
            a(f"s_lshl_b32 s{sA}, s2, 3")
            a(f"s_add_u32 s{sA}, s{sA}, s{sWAVE}")
            a(f"s_lshl_b32 s{sA}, s{sA}, 7")
            a(f"s_add_u32 s{sA}, s{sA}, {STAMPS}")
            a("v_mov_b32 v2, 0")
            a("s_mov_b64 exec, 1")
            if "clk" in self.exp:
                a("s_sub_u32 s98, s98, s96")
                a(f"s_add_u32 s{ST0+6}, s{ST0}, s98")
                a(f"s_addc_u32 s{ST0+7}, s{ST0+1}, 0")
            for i in range(12):
                a(f"v_mov_b32 v4, s{ST0+2*i}")
                a(f"v_mov_b32 v5, s{ST0+2*i+1}")
                a(f"buffer_store_dwordx2 v[4:5], v2, {sr(sWS)}, s{sA} offen offset:{8*i}")
        if self.stretch is not None:
            a("s_cmp_lg_u32 s2, 0")
            a("s_cbranch_scc1 L_END")
            a(f"s_cmp_lg_u32 s{sWAVE}, 0")
            a("s_cbranch_scc1 L_END")
            a(f"s_memrealtime s[{sA}:{sA+1}]")
            a("s_waitcnt lgkmcnt(0)")
            a(f"s_sub_u32 s{sC}, s{ST0+2*self.stretch}, s{ST0}")
            a(f"s_lshl_b32 s{sC}, s{sC}, 2")
            a(f"s_min_u32 s{sC}, s{sC}, 100000")
            a(f"s_add_u32 s{sC}, s{sC}, s{sA}")
            a("L_STRETCH:")
            a(f"s_memrealtime s[{sA}:{sA+1}]")
            a("s_waitcnt lgkmcnt(0)")
            a(f"s_cmp_lt_u32 s{sA}, s{sC}")
            a("s_cbranch_scc1 L_STRETCH")
        a("L_END:")
        a("s_endpgm")
        a("L_TEXTEND:")
        K = NAME + "_kernel"
        head = open("header.txt").read() if True else ""
        txt = head + f"; @launch grid=(256,1,1) block=(512,1,1) lds={LDS_BYTES}\n.amdgcn_target \"amdgcn-amd-amdhsa--gfx950\"\n"
        txt += kernel_head(K) + a.text() + kernel_desc(K, 256, 102, 256)
        return txt

if __name__ == "__main__":
    out = sys.argv[1]
    stretch = [int(x.split("=")[1]) for x in sys.argv if x.startswith("--stretch=")]
    g = Gen(stretch=stretch[0] if stretch else None, stamps="--stamps" in sys.argv or "--dbgspan" in sys.argv or bool(stretch), rot="--norot" not in sys.argv,
            dbgspan=list(range(12)) if "--dbgspan" in sys.argv else None)
    txt = g.build()
    open(out, "w").write(txt)
    bad = hazard.check(txt)
    print("lines", txt.count("\n"), "hazards", len(bad))
```
